```python
import torch

def _softmax(x, axis=-1):
    return torch.softmax(x, dim=axis)
def _gelu(x):
    return torch.nn.functional.gelu(x, approximate="tanh")
def _silu(x):
    return torch.nn.functional.silu(x)
def _sigmoid(x):
    return torch.sigmoid(x)
def _layernorm(x, axis=-1, eps=1e-5):
    m = x.mean(dim=axis, keepdim=True)
    v = x.var(dim=axis, keepdim=True, unbiased=False)
    return (x - m) / torch.sqrt(v + eps)
def _scatter_add(tgt, idx, src, axis=0):
    return tgt.clone().index_add_(axis, idx, src)
def _segment_sum(src, seg, n):
    out = torch.zeros((n,) + src.shape[1:], dtype=src.dtype)
    return out.index_add_(0, seg, src)
def _pad(x, pw):
    flat = tuple(v for pair in reversed(pw) for v in pair)
    return torch.nn.functional.pad(x, flat)

kernel_name = 'parallel_sum__ssm_conv_h3__dense_activation_silu__prompt'

def setup_inputs():

    _w = (lambda a: (lambda t: t.to(torch.bfloat16) if t.is_floating_point() else t)(torch.as_tensor(a)))
    def _A_setup():
        B, S, D = 1, 2048, 640
        ks = 4
        return {
            "q": _w((lambda *s: torch.randn(*s, dtype=torch.bfloat16) * 0.05)(B, S, D)),
            "k": _w((lambda *s: torch.randn(*s, dtype=torch.bfloat16) * 0.2)(B, S, D)),
            "v": _w((lambda *s: torch.randn(*s, dtype=torch.bfloat16) * 0.2)(B, S, D)),
            "shift_k": _w((lambda *s: torch.randn(*s, dtype=torch.bfloat16) * 0.2)(D, ks) * 0.5),
            "ssm_k": _w((lambda *s: torch.randn(*s, dtype=torch.bfloat16) * 0.4)(D, S) * (1.0 / S ** 0.5)),
            "ssm_D": _w((lambda *s: torch.randn(*s, dtype=torch.bfloat16) * 0.2)(D)),
        }
    _A_in = _A_setup()

    def _B_setup():
        B, S, D, F = 1, 2048, 640, 1728
        return {
            "x": _w((lambda *s: torch.randn(*s, dtype=torch.bfloat16) * 0.05)(B, S, D)),
            "w1": _w((lambda *s: torch.randn(*s, dtype=torch.bfloat16) * 0.8)(D, F) * (D ** -0.5)),
            "w2": _w((lambda *s: torch.randn(*s, dtype=torch.bfloat16) * 0.1)(F, D) * (F ** -0.5)),
        }
    _B_in = _B_setup()

    return {
        "A_q": _A_in["q"],
        "A_k": _A_in["k"],
        "A_v": _A_in["v"],
        "A_shift_k": _A_in["shift_k"],
        "A_ssm_k": _A_in["ssm_k"],
        "A_ssm_D": _A_in["ssm_D"],
        "B_x": _B_in["x"],
        "B_w1": _B_in["w1"],
        "B_w2": _B_in["w2"],
    }

def reference(A_q, A_k, A_v, A_shift_k, A_ssm_k, A_ssm_D, B_x, B_w1, B_w2):
    def _A_ref(q, k, v, shift_k, ssm_k, ssm_D):
        B, S, D = q.shape
        ks = shift_k.shape[-1]
        k_pad = _pad(k, ((0, 0), (ks - 1, 0), (0, 0)))
        k_shift = torch.zeros_like(k)
        for t in range(ks):
            k_shift = k_shift + k_pad[:, t:t + S, :] * shift_k[:, ks - 1 - t][None, None, :]
        kv = k_shift * v
        L = 2 * S
        kv_pad = _pad(kv, ((0, 0), (0, S), (0, 0)))
        kf_pad = _pad(ssm_k, ((0, 0), (0, S)))
        kv_f = (lambda x, axes=(-2,-1): torch.fft.rfft2(x.float(), dim=axes))(kv_pad[:, None, :, :], axes=(1, 2))
        kf_f = (lambda x, axes=(-2,-1): torch.fft.rfft2(x.float(), dim=axes))(kf_pad[:, None, :], axes=(1, 2))
        kf_f = (lambda x, *d: x.permute(*d))(kf_f, 1, 2, 0)
        y_f = kv_f * kf_f[None, :, :, :]
        y = (lambda x, s, axes=(-2,-1): torch.fft.irfft2(x, s=s, dim=axes).to(torch.bfloat16))(y_f, (1, L), axes=(1, 2))[:, 0, :S, :]
        y = y + kv * ssm_D[None, None, :]
        return q * y

    def _B_ref(x, w1, w2):
        h = torch.einsum("bsd,df->bsf", x, w1)
        h = _silu(h)
        out = torch.einsum("bsf,fd->bsd", h, w2)
        return out

    x = A_q
    xn = _layernorm(x, axis=-1)
    return x + _A_ref(xn, A_k, A_v, A_shift_k, A_ssm_k, A_ssm_D) + _B_ref(xn, B_w1, B_w2)
```

```python
import re


class I:
    __slots__ = ("text", "kind", "tag", "vm", "lg", "opt")

    def __init__(self, text, kind="other", tag=None, vm=None, lg=None, opt=False):
        self.text, self.kind, self.tag, self.vm, self.lg, self.opt = text, kind, tag, vm, lg, opt


def classify(text):
    m = text.split()[0]
    if m.endswith(":"):
        return "label"
    if m.startswith(("buffer_", "global_")):
        return "vm"
    if m.startswith("ds_"):
        return "lgkm"
    if m.startswith(("s_load", "s_memrealtime", "s_memtime", "s_buffer_load")):
        return "smem"
    return "other"


class Seq(list):
    def __call__(self, text, tag=None, opt=False):
        for line in text.strip().split("\n"):
            line = line.split(";")[0].strip()
            if line:
                self.append(I(line, classify(line), tag, opt=opt))
        return self

    def wait(self, vm=None, lg=None):
        self.append(I("", "wait", vm=vm, lg=lg))
        return self

    def add(self, other):
        self.extend(other)
        return self


def groups(seq, pred):
    out, cur = [], []
    for i in seq:
        if pred(i) and cur:
            out.append(cur)
            cur = []
        cur.append(i)
    if cur:
        out.append(cur)
    return out


def atoms(seq):
    out, cur, hold = [], [], False
    for n, i in enumerate(seq):
        cur.append(i)
        nxt = seq[n + 1].text if n + 1 < len(seq) else ""
        if i.kind == "wait" or nxt.startswith(("s_cselect", "s_cbranch", "s_addc")):
            continue
        out.append(cur)
        cur = []
    if cur:
        out.append(cur)
    return out


def weave(main, fill, start=0, end=None, is_slot=lambda i: i.kind != "label"):
    slots = [n for n, i in enumerate(main) if is_slot(i)]
    slots = slots[start:end]
    out = Seq()
    at = {}
    nf = len(fill)
    for j, f in enumerate(fill):
        s = slots[min(len(slots) - 1, (j * len(slots)) // nf)]
        at.setdefault(s, []).append(f)
    for n, i in enumerate(main):
        out.append(i)
        for f in at.get(n, []):
            if isinstance(f, I):
                out.append(f)
            else:
                out.extend(f)
    return out


def cost(i):
    if i.kind == "label":
        return (0, 0, 0)
    t = i.text
    if t.startswith(("v_exp", "v_rcp", "v_sqrt", "v_rsq", "v_log")):
        return (2, 2, 0)
    if t.startswith(("ds_write_b128", "buffer_store_dwordx")):
        return (2, 3, 1)
    if t.startswith("s_cbranch"):
        return (2, 3, 0)
    if t.startswith("ds_write"):
        return (2, 2, 1)
    if t.startswith("v_"):
        return (1, 1, 0)
    return (0, 1, 1 if i.kind in ("vm", "lgkm") else 0)


CAP = (2, 3, 1)


def csum(g):
    c = [cost(i) for i in g]
    return [sum(x[k] for x in c) for k in range(3)]


def _gaps(main):
    head, gaps = [], []
    for i in main:
        if i.text.startswith("v_mfma"):
            gaps.append([i])
        elif gaps:
            gaps[-1].append(i)
        else:
            head.append(i)
    return head, gaps


def fit(main, fill, start=0, end=None, front=False):
    head, gaps = _gaps(main)
    end = len(gaps) if end is None else min(end, len(gaps))
    fill = [[f] if isinstance(f, I) else list(f) for f in fill]
    isvm = [any(i.kind == "vm" for i in f) or not f for f in fill]
    nvm = sum(isvm)
    span = end - start
    want = []
    if nvm:
        pos = [k for k, v in enumerate(isvm) if v]
        tgt = [start + (3 * j + 1) * span // (3 * nvm) for j in range(nvm)]
        prev_k, prev_t = -1, start - 1
        want = [None] * len(fill)
        for k, t in list(zip(pos, tgt)) + [(len(fill), end)]:
            n = k - prev_k - 1
            for m in range(n):
                lo = max(prev_t + 1, t - max(1, n)) if k < len(fill) else prev_t + 1
                want[prev_k + 1 + m] = min(end - 1, lo + m * max(0, t - lo) // n)
            if k < len(fill):
                want[k] = t
            prev_k, prev_t = k, t
    else:
        tot, done = sum(max(1, csum(f)[1]) for f in fill), 0
        for f in fill:
            want.append(start + done * span // max(1, tot))
            done += max(1, csum(f)[1])
    extra = 0
    while True:
        used = [csum(g[1:]) for g in gaps]
        place, k, ok = [], start, True
        for f, w in zip(fill, want):
            c = csum(f)
            if not front:
                k = max(k, w)
            while k < end and c[1] and not (all(used[k][x] + c[x] <= CAP[x] + extra or c[x] == 0 for x in range(3)) or used[k][1] == 0):
                k += 1
            if k >= end:
                ok = False
                break
            for x in range(3):
                used[k][x] += c[x]
            place.append(k)
        if ok:
            break
        if not front:
            front = True
        else:
            extra += 1
            front = extra >= 8
    add = {}
    for f, k in zip(fill, place):
        add.setdefault(k, []).extend(f)
    out = Seq(head)
    for k, g in enumerate(gaps):
        out.append(g[0])
        out.extend(add.get(k, []))
        out.extend(g[1:])
    return out


def overload(seq):
    _, gaps = _gaps(seq)
    return [sum(max(0, csum(g[1:])[x] - CAP[x]) for g in gaps[:-1]) for x in range(3)]


def resolve_waits(seq):
    vm, lg = [], []
    smem = False
    out = []
    for i in seq:
        if i.kind == "vm":
            vm.append(i)
        elif i.kind == "lgkm":
            lg.append(i)
        elif i.kind == "smem":
            smem = True
        elif i.kind == "wait":
            parts = []
            keep = (vm, lg, smem)
            if i.vm is not None:
                if i.vm == 0:
                    n = 0
                    vm = []
                else:
                    tags = i.vm if isinstance(i.vm, (tuple, list)) else (i.vm,)
                    idx = [k for k, o in enumerate(vm) if o.tag in tags]
                    if idx:
                        rest = vm[idx[-1] + 1:]
                        n = min(63, len([o for o in rest if not o.opt]))
                        vm = rest
                    else:
                        n = None
                if n is not None:
                    parts.append("vmcnt(%d)" % n)
            if i.lg is not None:
                if i.lg == 0 or smem:
                    n = 0
                    lg = []
                    smem = False
                else:
                    tags = i.lg if isinstance(i.lg, (tuple, list)) else (i.lg,)
                    idx = [k for k, o in enumerate(lg) if o.tag in tags]
                    if idx:
                        rest = lg[idx[-1] + 1:]
                        n = min(15, len([o for o in rest if not o.opt]))
                        lg = rest
                    else:
                        n = None
                if n is not None:
                    parts.append("lgkmcnt(%d)" % n)
            if parts:
                out.append(I("s_waitcnt " + " ".join(parts)))
            if i.opt:
                vm, lg, smem = keep
            continue
        out.append(i)
    return out


_REG = re.compile(r"^(-|abs\()?([vas])(\d+|\[(\d+):(\d+)\])\)?$")


def regs(op):
    op = op.strip()
    if op in ("vcc", "exec", "m0"):
        return {op}
    if op in ("vcc_lo", "vcc_hi"):
        return {"vcc"}
    m = _REG.match(op)
    if not m:
        return set()
    c = m.group(2)
    if m.group(4):
        return {(c, n) for n in range(int(m.group(4)), int(m.group(5)) + 1)}
    return {(c, int(m.group(3)))}


TRANS = ("v_exp_", "v_log_", "v_rcp_", "v_rsq_", "v_sqrt_", "v_sin_", "v_cos_")


class Dec:
    def __init__(self, text):
        parts = text.split(None, 1)
        self.m = m = parts[0]
        rest = parts[1] if len(parts) > 1 else ""
        ops = [o.strip() for o in re.split(r",(?![^\[]*\])", rest)]
        if ops:
            last = ops[-1].split()
            self.mods = last[1:] if last else []
            ops[-1] = last[0] if last else ""
        else:
            self.mods = []
        R = [regs(o) for o in ops]
        self.mfma = m.startswith("v_mfma")
        self.valu = m.startswith("v_") and not self.mfma
        self.salu = m.startswith("s_")
        self.vmem = m.startswith(("buffer_", "global_"))
        self.ds = m.startswith("ds_")
        self.trans = m.startswith(TRANS)
        self.dpp = any(x.startswith(("row_", "quad_perm", "wave_")) for x in self.mods)
        self.perm = m.startswith("v_permlane")
        self.lanerd = m.startswith(("v_readfirstlane", "v_readlane"))
        self.ldsdma = self.vmem and ("lds" in self.mods or "_lds_" in m)
        self.w, self.r = set(), set()
        self.srcc, self.ab, self.stdata = set(), set(), set()
        self.states = 1
        if m == "s_nop":
            self.states = int(ops[0], 0) + 1
        elif self.mfma:
            self.w = R[0]
            self.ab = R[1] | R[2]
            self.srcc = R[3]
            self.r = self.ab | self.srcc
            self.passes = 8 if "32x32" in m else 4
        elif self.vmem:
            if self.ldsdma:
                self.r = set().union(*R) | {"m0"}
            elif "_load" in m:
                self.w = R[0]
                self.r = set().union(*R[1:])
            elif "_atomic" in m:
                self.r = set().union(*R)
            else:
                self.r = set().union(*R)
                if m.endswith(("x3", "x4")):
                    self.stdata = R[0] if m.startswith("buffer_") else R[1]
        elif self.ds:
            if "_read" in m or "permute" in m or "swizzle" in m:
                self.w = R[0]
                self.r = set().union(*R[1:])
            else:
                self.r = set().union(*R)
        elif self.valu:
            if self.perm or m.startswith("v_swap"):
                self.w = R[0] | R[1]
                self.r = R[0] | R[1]
            else:
                self.w = set(R[0])
                srcs = R[1:]
                if "_co_" in m:
                    self.w |= R[1]
                    srcs = R[2:]
                self.r = set().union(*srcs) if srcs else set()
                if m.startswith(("v_fmac", "v_dot2c", "v_writelane")) or self.dpp:
                    self.r |= R[0]
        elif self.salu:
            if m.startswith(("s_cmp", "s_cbranch", "s_branch", "s_waitcnt", "s_barrier", "s_endpgm", "s_sleep", "s_setprio", "s_bitcmp")):
                self.r = set().union(*R) if R else set()
            elif R:
                self.w = set(R[0])
                self.r = set().union(*R[1:]) if len(R) > 1 else set()
                if "saveexec" in m:
                    self.w |= {"exec"}


def _sg(s):
    return {x for x in s if x == "vcc" or (isinstance(x, tuple) and x[0] == "s")}


def _vg(s):
    return {x for x in s if isinstance(x, tuple) and x[0] in "va"}


def need(p, c):
    n = 0
    if p.valu:
        pv = _vg(p.w)
        if c.mfma and pv & c.r:
            n = max(n, 2)
        if (c.dpp or c.perm) and pv & c.r:
            n = max(n, 2)
        if c.lanerd and pv & c.r:
            n = max(n, 1)
        if p.trans and c.valu and not c.trans and pv & c.r:
            n = max(n, 1)
        ps = _sg(p.w)
        if c.vmem and ps & c.r:
            n = max(n, 5)
        if c.valu and ps & c.r:
            n = max(n, 4 if c.m.startswith(("v_readlane", "v_writelane")) else 2)
        if any(x.startswith(("op_sel", "dst_sel")) for x in p.mods) and not p.m.startswith("v_pk_") and c.valu and pv & (c.r | c.w):
            n = max(n, 1)
    if p.mfma:
        big = p.passes == 8
        if c.mfma:
            if p.w & c.ab:
                n = max(n, 12 if big else 8)
            if p.w & c.srcc and not (p.w == c.srcc and p.passes == c.passes):
                n = max(n, 10 if big else 6)
            if p.w & c.w and not (p.w & c.srcc):
                n = max(n, 12 if big else 8)
        elif (c.valu or c.vmem or c.ds) and p.w & (c.r | c.w):
            n = max(n, 12 if big else 8)
        if c.valu and p.srcc & c.w:
            n = max(n, 7 if big else 3)
    if p.salu and "m0" in p.w and c.ldsdma:
        n = max(n, 1)
    if p.stdata and p.stdata & c.w:
        n = max(n, 2)
    return n


def pad_hazards(seq, report=None):
    out = []
    hists = [[]]
    pending = {}
    for i in seq:
        if i.kind == "label":
            hists = hists + pending.pop(i.text[:-1], [])
            out.append(i)
            continue
        if i.text.startswith("."):
            out.append(i)
            continue
        d = Dec(i.text)
        pad = 0
        for hist in hists:
            dist = 0
            for p in reversed(hist):
                n = need(p, d)
                if n > dist:
                    pad = max(pad, n - dist)
                dist += p.states
                if dist >= 12:
                    break
        new = [d]
        if pad:
            nop = I("s_nop %d" % (pad - 1))
            out.append(nop)
            new = [Dec(nop.text), d]
            if report is not None:
                report.append((pad, i.text))
        out.append(i)
        uniq = {}
        for hist in hists:
            h = (hist + new)[-13:]
            uniq[tuple(id(x) for x in h)] = h
        hists = list(uniq.values())
        if d.m.startswith(("s_cbranch", "s_branch")):
            pending.setdefault(i.text.split()[1], []).extend(hists)
            if d.m == "s_branch":
                hists = [[]]
        if d.m == "s_endpgm":
            hists = [[]]
    return out


def render(seq):
    return "\n".join((i.text if i.kind == "label" else "    " + i.text) for i in seq) + "\n"
```

```python
S, D, F = 2048, 640, 1728
NG = 144
NF = 107
FL_KR = 0x2000
FL_R = 0xc000
STATS = 0x4000
FL_H = 0x8000
FL_C = 0xe000
FL_Y = 0x10000
CSUM = 0x28000
STAMP = 0x18000
RS = 4224
STAT2 = 0x30000
KVT = 0x34000
YT = KVT + 640 * RS
W2R = YT + 640 * RS
HT = 56 * 1024
HB = W2R + 8 * 54 * 5120
WS_USED = HB + 128 * HT
L_WR = 0
L_XR = 73728
G_RT = L_XR + 49152
CPY = 4640
CA_SZ = 8 * CPY
CONV_SZ = CA_SZ + 2 * RS
F_B = (0, CONV_SZ, 2 * CONV_SZ)
F_KT = F_B[1]
F_CT = F_B[2]
L_X = 3 * CONV_SZ
F_RT = L_X
L_ST = L_X + 24576
L_CS = L_ST + 1024
LDS_BYTES = L_CS + 1024
assert LDS_BYTES <= 163840 and L_X % 256 == 0 and CONV_SZ % 256 == 0
L_XT = 0
L_P = 4 * 3072
L_YT = L_P + 61440
```

```python
import sys, argparse, re, subprocess, tempfile, os
from asmlib import *
from layout import *

NAME = "parallel_sum__ssm_conv_h3__dense_activation_silu__prompt"
ap = argparse.ArgumentParser()
ap.add_argument("-o", default="cdna_kernels/%s.s" % NAME)
ap.add_argument("--stamps", action="store_true")
ap.add_argument("--leak", default="")
ap.add_argument("--cyc", action="store_true")
ap.add_argument("--sp", default="")
ap.add_argument("--x", default="")
ap.add_argument("--kpoll", type=int, default=-1)
ap.add_argument("--rot", type=int, default=0)
ap.add_argument("--np", type=int, default=4)
ap.add_argument("--ford", default="c")
ap.add_argument("--nq", type=int, default=10)
ap.add_argument("--pre", type=int, default=8)
ap.add_argument("--ramp", type=int, default=2)
ap.add_argument("--m0", type=int, default=1)
ap.add_argument("--kf", type=int, default=1)
ap.add_argument("--rpoll", type=int, default=0)
ap.add_argument("--rchk", type=int, default=36)
ap.add_argument("--k0x", type=int, default=21)
ap.add_argument("--spill", type=int, default=64)
ap.add_argument("--cm", type=int, default=3)
ap.add_argument("--ypub", type=int, default=14)
ap.add_argument("--fin", type=int, default=30)
ap.add_argument("--xb", type=int, default=90)
ap.add_argument("--hchk", type=int, default=400)
ap.add_argument("--one", type=int, default=0)
ap.add_argument("--k2", type=int, default=21)
ap.add_argument("--r0", type=int, default=5)
ap.add_argument("--sep", type=int, default=1)
ap.add_argument("--kp", type=int, default=1)
ap.add_argument("--kchk", type=int, default=3)
ap.add_argument("--a1", type=int, default=6)
ap.add_argument("--a2", type=int, default=8)
ap.add_argument("--fo", type=int, default=1)
ap.add_argument("--gt", type=int, default=0)
ap.add_argument("--k0", type=int, default=128)
ap.add_argument("--tpos", type=int, default=1)
ap.add_argument("--sleep", type=int, default=4)
ap.add_argument("--n1", type=int, default=28)
ap.add_argument("--ne", type=int, default=16)
ap.add_argument("--rb", type=int, default=8)
ap.add_argument("--hpub", type=int, default=40)
ap.add_argument("--look", type=int, default=12)
ap.add_argument("--hpoll", type=int, default=372)
ap.add_argument("--ypub0", type=int, default=270)
ap.add_argument("--wsp", type=int, default=42)
ap.add_argument("--weven", type=int, default=1)
ap.add_argument("--fin0", type=int, default=3)
ap.add_argument("--ypoll", type=int, default=25)
ap.add_argument("--ychk", type=int, default=9)
ap.add_argument("--ybar", type=int, default=46)
ap.add_argument("--warm", type=int, default=1)
ap.add_argument("--near", type=int, default=2)
ap.add_argument("--codepf", type=int, default=1)
O = ap.parse_args()
if O.leak:
    O.stamps = True

Q, K, V, W1, W2, SK, OUT, WS, SH = ("s[%d:%d]" % (b, b + 3) for b in range(28, 64, 4))
sK1, sK2, sFI = "s0", "s1", "s3"
sT0, sT1, sT2, sT3 = "s4", "s5", "s6", "s7"
sTO, sFKR, sFH, sFY = "s8", "s9", "s11", "s12"
sDraw, sPH, sPY, sHST, sW2B = ("s17", "s18", "s19"), "s20", "s21", "s22", "s23"
sH = ("s24", "s25", "s26", "s27")
sW, sTAG, sXCD, sLI, sRG, sCH = "s64", "s65", "s66", "s67", "s68", "s69"
sRB, sCB, sXO, sWO, sMX, sMW = "s70", "s71", "s73", "s74", "s75", "s76"
sTB, sC2, sPAIR = "s77", "s78", "s79"
sHM = "s[80:81]"
sNL = "s[82:83]"
sPW = ("s84", "s85", "s86")
sUR, sURm, sSSM, sYST, sST1, sST2, sXm, sYm, sYo = ("s%d" % i for i in range(87, 96))
sKV = ("s96", "s97", "s98", "s99")
OOB = "0x80000000"

(vA, vB, vXW, vXR, vPL, vKS, vR0, vR1, vR2, vR3) = ("v%d" % i for i in range(1, 11))
(vL16, vL16x, vL8, vFL, vFLY, vTAG, vPR, vXT, vYT, vOL) = ("v%d" % i for i in range(14, 24))
vXO = ("v24", "v25", "v26")
(vYO, vN64, vYF, vHF, vKF, vSTP, t0, t1, t2) = ("v%d" % i for i in range(27, 36))
T3 = 252
t3 = "v252"
vSq, vSs = "v253", "v254"
vCW, vCZ = "v239", "v255"
SR = 160
KVA = 232


def vr(b, n=1):
    return "v%d" % b if n == 1 else "v[%d:%d]" % (b, b + n - 1)


def ar(b, n=1):
    return "a%d" % b if n == 1 else "a[%d:%d]" % (b, b + n - 1)


def stamp(q, i, grp=""):
    if O.stamps and (grp == O.sp or i in (0, 15)):
        q("%s s[100:101]" % ("s_memtime" if O.cyc else "s_memrealtime"))
        q.wait(lg=0)
        q("v_writelane_b32 %s, s100, %d" % (vSTP, i))


_lbl = [0]
SLOW = {}


def lbl(p):
    _lbl[0] += 1
    return "L_%s%d" % (p, _lbl[0])


def spin(q, issue, check):
    a, b = lbl("spin"), lbl("ok")
    check(q)
    q("s_cbranch_vccnz %s" % a)
    q(b + ":")
    s = SLOW[b + ":"] = Seq()
    s(a + ":")
    issue(s)
    s("s_waitcnt vmcnt(0)")
    check(s)
    s("s_cbranch_vccz %s" % b)
    s("s_sleep %d" % O.sleep)
    s("s_sub_u32 %s, %s, 1" % (sTO, sTO))
    s("s_cbranch_scc0 %s" % a)
    s("s_mov_b32 %s, 0" % sTO)
    s("s_branch %s" % b)


def poll(n, dst, voff, soff, tag=None):
    def issue(q):
        q("buffer_load_dword%s %s, %s, %s, %s offen sc1" % ("" if n == 1 else "x%d" % n, vr(dst, n), voff, WS, soff), tag=tag)

    def check(q):
        if n == 1:
            q("v_cmp_ne_u32 vcc, %s, %s" % (sTAG, vr(dst)))
            return
        q("v_bitop3_b32 %s, %s, %s, %s bitop3:0x7e" % (vr(dst), vr(dst), vr(dst + 1), vTAG))
        if n == 4:
            q("v_bitop3_b32 %s, %s, %s, %s bitop3:0x7e" % (vr(dst + 2), vr(dst + 2), vr(dst + 3), vTAG))
            q("v_or_b32 %s, %s, %s" % (vr(dst), vr(dst), vr(dst + 2)))
        q("v_cmp_ne_u32 vcc, 0, %s" % vr(dst))
    return issue, check


def publish(tags, soff, voff=None):
    q = Seq()
    q.wait(vm=tags)
    q("s_barrier")
    q("buffer_store_dword %s, %s, %s, %s offen sc1" % (vTAG, voff or vFL, WS, soff))
    return q


def flat(g):
    q = Seq()
    for x in g:
        if isinstance(x, I):
            q.append(x)
        else:
            q.add(x)
    return q


def mix(a, b):
    out, n = [], max(len(a), len(b))
    ia = ib = 0
    for k in range(1, n + 1):
        while ia < len(a) * k // n:
            out.append(a[ia])
            ia += 1
        while ib < len(b) * k // n:
            out.append(b[ib])
            ib += 1
    return out


def split(g):
    out = []
    for x in g:
        x = [x] if isinstance(x, I) else x
        out.extend(atoms(x) if len(x) else [x])
    return out


def is_mfma(i):
    return i.text.startswith("v_mfma")


def lin(q, dst, terms, const=0, tmp=sT3):
    first = True
    for r, m in terms:
        d = dst if first else tmp
        if m == 1:
            if first:
                if r != dst:
                    q("s_mov_b32 %s, %s" % (dst, r))
            else:
                q("s_add_u32 %s, %s, %s" % (dst, dst, r))
        else:
            q("s_mul_i32 %s, %s, %d" % (d, r, m))
            if not first:
                q("s_add_u32 %s, %s, %s" % (dst, dst, tmp))
        first = False
    if const:
        q("s_add_u32 %s, %s, %d" % (dst, dst, const & 0xffffffff))


SRDS = {"Q": (28, 4, S * D * 2), "K": (32, 6, S * D * 2), "V": (36, 8, S * D * 2), "W1": (40, 18, D * F * 2), "W2": (44, 20, D * F * 2),
        "SK": (48, 12, S * D * 2), "OUT": (52, 22, S * D * 2), "WS": (56, 26, WS_USED), "SH": (60, 10, D * 8)}


def early(seq):
    for i in seq:
        i.text = re.sub(r"\bs([4-7])\b", lambda m: "s%d" % (80 + int(m.group(1))), i.text)
    return seq


def prologue():
    q = Seq()
    q("s_cmp_ge_u32 s2, 256")
    q("s_cbranch_scc1 L_end")
    stamp(q, 0)
    q("s_load_dwordx16 s[4:19], s[0:1], 0")
    q("s_load_dwordx8 s[20:27], s[0:1], 64")
    q("v_lshrrev_b32 v1, 6, v0")
    q("v_and_b32 v0, 63, v0")
    q("v_readfirstlane_b32 %s, v1" % sW)
    q("s_and_b32 %s, s2, 7" % sXCD)
    q("s_lshr_b32 %s, s2, 3" % sLI)
    if O.codepf:
        q("s_getpc_b64 s[70:71]")
        q("L_pc:")
        q("s_lshl_b32 s72, %s, 2" % sLI)
        q("s_add_u32 s72, s72, %s" % sW)
        q("s_mul_i32 s72, s72, (L_end-L_pc+16383)/16384*128")
        q("v_lshl_add_u32 v2, v0, 7, s72")
        q("v_min_u32 v2, L_end-L_pc, v2")
        q("s_mov_b32 exec_lo, (1<<((L_end-L_pc+16383)/16384))-1")
        q("s_mov_b32 exec_hi, 0")
        q("global_load_dword a255, v2, s[70:71]")
        q("s_mov_b64 exec, -1")
    q("s_lshr_b32 %s, %s, 1" % (sRG, sXCD))
    q("s_and_b32 %s, %s, 1" % (sCH, sXCD))
    q("v_and_b32 %s, 31, v0" % vKF)
    q("v_lshlrev_b32 %s, 2, %s" % (vKF, vKF))
    for srd, p, n in SRDS.values():
        q("s_mov_b32 s%d, %d" % (srd + 2, n))
        q("s_mov_b32 s%d, 0x20000" % (srd + 3))
    return q


def warm(role):
    q = Seq()
    if O.warm:
        q("L_wa_%s:" % role)
        q("s_mov_b64 exec, 0")
        for w in range(3):
            q("s_cmp_eq_u32 %s, %d" % (sW, w))
            q("s_cbranch_scc1 L_we_%s%d" % (role, w))
        q("s_branch L_we_%s3" % role)
        q("L_wb_%s:" % role)
        q("s_mov_b64 exec, -1")
    return q


def srd_ptrs(names):
    q = Seq()
    for n in names:
        srd, p, _ = SRDS[n]
        q("s_mov_b64 s[%d:%d], s[%d:%d]" % (srd, srd + 1, p, p + 1))
    return q


def tag_load():
    return Seq()("s_load_dword %s, s[56:57], 0" % sTAG)


def tag_ready():
    q = Seq()
    q.wait(lg=0)
    q("s_mul_i32 %s, %s, 0x9e3779b1" % (sTAG, sTAG))
    q("s_add_u32 %s, %s, 0x7f4a7c15" % (sTAG, sTAG))
    q("v_mov_b32 %s, %s" % (vTAG, sTAG))
    return q


def addr_min():
    q = Seq()
    q("s_mov_b32 %s, %s" % (sTO, "0" if "nospin" in O.x else "0x40000"))
    q("v_lshlrev_b32 %s, 4, v0" % vL16)
    q("v_lshlrev_b32 %s, 3, v0" % vL8)
    q("v_lshrrev_b32 %s, 4, v0" % t1)
    q("v_or_b32 %s, %s, %s" % (t2, sW, t1))
    q("v_min_u32 %s, 1, %s" % (t2, t2))
    q("v_lshl_or_b32 %s, %s, 31, %s" % (vFL, t2, vKF))
    q("v_and_b32 %s, 15, v0" % t0)
    q("v_lshlrev_b32 %s, 6, %s" % (vN64, t0))
    q("v_lshrrev_b32 %s, 3, v0" % t2)
    q("v_mul_u32_u24 %s, %d, %s" % (t2, RS - 128, t2))
    q("v_add_u32 %s, %s, %s" % (vYO, t2, vL16))
    return q


def addr_w2():
    q = Seq()
    q("s_and_b32 %s, %s, 3" % (sC2, sLI))
    lin(q, sC2, [(sC2, 1), (sCH, 4)])
    lin(q, sW2B, [(sC2, 54 * 5120), (sW, 14 * 5120)], W2R)
    if "w2hit" in O.x:
        lin(q, sW2B, [(sRG, 655360), (sW, 14 * 5120)])
    return q


def addr_g2():
    q = Seq()
    sCS, sG16 = sT0, sT2
    q("v_and_b32 %s, 15, v0" % t0)
    q("v_lshrrev_b32 %s, 4, v0" % t1)
    q("s_lshr_b32 %s, %s, 2" % (sTB, sLI))
    lin(q, sTB, [(sTB, 1), (sRG, 8)])
    q("s_lshr_b32 %s, %s, 1" % (sCS, sW))
    q("s_and_b32 %s, %s, %s" % (sG16, sCS, sW))
    q("v_lshl_or_b32 %s, %s, 31, %s" % (vL16x, sG16, vL16))
    lin(q, sPY, [(sC2, 40 * 64), (sW, 256)], FL_Y)
    q("s_sub_u32 %s, 2, %s" % (sG16, sCS))
    q("v_lshrrev_b32 %s, 2, v0" % t2)
    q("v_min_u32 %s, %s, %s" % (t2, sG16, t2))
    q("v_and_b32 %s, 0xc0, %s" % (vYF, vN64))
    q("v_lshl_add_u32 %s, %s, 10, %s" % (vYF, t2, vYF))
    q("s_lshr_b32 %s, %s, 1" % (sG16, sTB))
    lin(q, sPH, [(sG16, 1024)], FL_H)
    q("s_mul_i32 %s, %s, 19" % (sG16, sW))
    q("s_lshr_b32 %s, %s, 3" % (sG16, sG16))
    q("v_min_u32 %s, 2, v0" % vHF)
    q("v_add_u32 %s, %s, %s" % (vHF, sG16, vHF))
    q("v_min_u32 %s, 8, %s" % (vHF, vHF))
    q("v_lshlrev_b32 %s, 6, %s" % (vHF, vHF))
    lin(q, sCS, [(sTB, 4 * HT), (sW, 14 * 1024)], HB)
    for i in range(4):
        q("s_add_u32 %s, %s, %d" % (sG16, sW, 1 + i))
        q("s_and_b32 %s, %s, 3" % (sG16, sG16))
        if i < 3:
            lin(q, sPW[i], [(sG16, 15360)], L_P + 5120 * i)
        lin(q, sH[i], [(sG16, HT), (sCS, 1)])
        if "hhit" in O.x:
            lin(q, sH[i], [(sG16, HT), (sRG, 655360), (sW, 14 * 1024)], 300 * 1024)
    lin(q, sG16, [(sW, 15360)], L_P)
    q("v_add_u32 %s, %s, %s" % (vPR, sG16, vL16))
    lin(q, sXm, [(sW, 3072)], L_XT)
    q("v_add_u32 %s, %s, %s" % (vOL, sXm, vL16))
    q("v_mul_u32_u24 %s, 160, %s" % (vXT, t0))
    q("v_lshl_add_u32 %s, %s, 3, %s" % (vXT, t1, vXT))
    q("v_add_u32 %s, %s, %s" % (vXT, sXm, vXT))
    lin(q, sG16, [(sW, 32)], L_YT)
    q("v_lshrrev_b32 %s, 2, v0" % t2)
    q("v_mul_u32_u24 %s, 96, %s" % (t2, t2))
    q("v_add3_u32 %s, %s, %s, %s" % (vYT, t2, vL8, sG16))
    lin(q, sYm, [(sW, 1024)], L_YT)
    lin(q, sYo, [(sC2, 80 * RS), (sW, 8 * RS), (sTB, 128)], YT)
    lin(q, sG16, [(sTB, 4), (sW, 1)])
    q("s_lshr_b32 %s, %s, 3" % (sST2, sG16))
    lin(q, sST2, [(sST2, 1024 - 32), (sG16, 4)], STATS)
    lin(q, sG16, [(sG16, 16 * 1280), (sC2, 160)])
    for i in range(3):
        q("v_add_u32 %s, %d, v0" % (t0, 64 * i))
        q("v_mul_u32_u24 %s, 6554, %s" % (t2, t0))
        q("v_lshrrev_b32 %s, 16, %s" % (t2, t2))
        q("v_mul_u32_u24 %s, 1120, %s" % (t2, t2))
        q("v_lshl_add_u32 %s, %s, 4, %s" % (t2, t0, t2))
        q("v_add_u32 %s, %s, %s" % (vXO[i], sG16, t2))
    q("v_lshrrev_b32 %s, 5, v0" % t0)
    q("v_lshl_or_b32 %s, %s, 31, %s" % (vXO[2], t0, vXO[2]))
    return q


def addr_ssm():
    q = Seq()
    lin(q, sSSM, [(sPAIR, 8192), (sW, 2048)])
    q("s_and_b32 %s, %s, 1" % (sT1, sW))
    q("s_cselect_b64 %s, -1, 0" % sHM)
    return q


def addr_copies():
    q = Seq()
    q("s_lshr_b32 %s, %s, 1" % (sT0, sW))
    q("s_and_b32 %s, %s, 1" % (sT1, sW))
    lin(q, sT2, [(sT0, 4 * CPY), (sT1, 2048)], 384)
    q("v_add_u32 %s, %s, %s" % (vCW, sT2, vL16))
    lin(q, sT2, [(sW, 2 * CPY)])
    q("v_lshrrev_b32 %s, 5, v0" % t2)
    q("v_mul_u32_u24 %s, %d, %s" % (t2, CPY, t2))
    q("v_min_u32 %s, 92, %s" % (vCZ, vKF))
    q("v_lshl_add_u32 %s, %s, 2, %s" % (vCZ, vCZ, t2))
    q("v_add_u32 %s, %s, %s" % (vCZ, sT2, vCZ))
    return q


def addr_conv(ca, ur, x):
    q = Seq()
    sCS, sHF, sG16 = sT0, sT1, sT2
    q("s_lshr_b32 %s, %s, 1" % (sCS, sW))
    q("s_and_b32 %s, %s, 1" % (sHF, sW))
    lin(q, sFY, [(sPAIR, 64)], FL_Y)
    lin(q, sG16, [(sCS, 4 * CPY), (sHF, 256)], ca)
    q("v_and_b32 %s, 3, v0" % vB)
    q("v_mul_u32_u24 %s, %d, %s" % (vA, CPY, vB))
    q("v_bfe_u32 %s, v0, 2, 2" % vB)
    q("v_lshl_add_u32 %s, %s, 7, %s" % (vA, vB, vA))
    q("v_and_b32 %s, 48, v0" % vXW)
    q("v_add3_u32 %s, %s, %s, %s" % (vA, vA, vXW, sG16))
    lin(q, sG16, [(sCS, RS), (sHF, 256)], ur + 120)
    q("v_and_b32 %s, 0x78, %s" % (vB, vL8))
    q("v_sub_u32 %s, %s, %s" % (vB, vXW, vB))
    q("v_add_u32 %s, %s, %s" % (vB, sG16, vB))
    lin(q, sURm, [(sCS, RS), (sHF, 2048)])
    lin(q, sUR, [(sPAIR, 2 * RS), (sURm, 1)], KVT)
    q("s_add_u32 %s, %s, %d" % (sYST, sUR, YT - KVT))
    lin(q, sG16, [(sW, 4096)], x)
    q("v_add_u32 %s, %s, %s" % (vXW, sG16, vL16))
    q("s_xor_b32 %s, %s, 1" % (sG16, sW))
    lin(q, sG16, [(sG16, 4096)], x)
    q("v_add_u32 %s, %s, %s" % (vXR, sG16, vL16))
    return q


def ur_pads(urs, va, vz):
    q = Seq()
    q("v_lshrrev_b32 %s, 5, v0" % va)
    q("v_mul_u32_u24 %s, %d, %s" % (va, RS, va))
    q("v_add_u32 %s, %s, %s" % (va, va, vKF))
    q("v_mov_b32 %s, 0" % vz)
    prev = 0
    for ur in urs:
        q("v_add_u32 %s, %d, %s" % (va, ur + 4096 - prev, va))
        q("ds_write_b32 %s, %s" % (va, vz))
        prev = ur + 4096
    return q


def quarter_poll(base, n, va, dst, tag):
    iss, chk = poll(1, dst, va, "0", tag)
    a = Seq()
    lin(a, sT0, [(sW, n * 64)], base)
    a("v_min_u32 %s, %d, v0" % (va, n - 1))
    a("v_lshl_add_u32 %s, %s, 6, %s" % (va, va, sT0))
    iss(a)
    b = Seq()
    b.wait(vm=tag)
    spin(b, iss, chk)
    return a, b


def s_addr():
    q = Seq()
    lin(q, sT0, [(sXCD, 256 * 1280), (sLI, 1280), (sW, 32 * 1280)])
    q("s_cmp_ge_u32 %s, 16" % sLI)
    q("s_cselect_b32 %s, %s, %s" % (sT0, OOB, sT0))
    q("v_lshrrev_b32 %s, 5, v0" % t0)
    q("v_mul_u32_u24 %s, %d, %s" % (vSq, 16 * 1280, t0))
    q("v_add3_u32 %s, %s, %s, %s" % (vSq, vSq, vKF, sT0))
    lin(q, sT0, [(sW, 8)], L_ST)
    q("v_lshl_add_u32 %s, %s, 2, %s" % (vSs, t0, sT0))
    return q


def stats_out(tmp):
    rd, st = Seq(), Seq()
    rd("v_bfe_u32 %s, v0, 4, 1" % t1)
    rd("v_and_b32 %s, 28, %s" % (tmp, vKF))
    rd("v_lshl_add_u32 %s, %s, 5, %s" % (tmp, t1, tmp))
    rd("v_add_u32 %s, %d, %s" % (tmp, L_ST, tmp))
    rd("ds_read_b32 %s, %s" % (tmp, tmp), tag="so")
    st("v_mul_u32_u24 %s, %d, %s" % (t1, 1024 - 64, t1))
    st("v_add_u32 %s, %s, %s" % (t1, t1, vKF))
    st("v_lshrrev_b32 %s, 5, v0" % t2)
    st("v_or_b32 %s, %s, %s" % (t2, sW, t2))
    st("v_min_u32 %s, 1, %s" % (t2, t2))
    st("v_lshl_or_b32 %s, %s, 31, %s" % (t1, t2, t1))
    st("s_lshr_b32 %s, %s, 4" % (sT0, sLI))
    lin(st, sT0, [(sT0, STAT2 - STATS - 1024), (sXCD, 2048), (sLI, 64)], STATS)
    st("s_mov_b32 vcc_lo, 0x00ff00ff")
    st.wait(lg="so")
    st("v_cndmask_b32 %s, %s, %s, vcc" % (tmp, vTAG, tmp))
    st("buffer_store_dword %s, %s, %s, %s offen sc1" % (tmp, t1, WS, sT0), tag="Sst")
    return rd, st


def s_loads(raw=SR, j=0):
    g = [Seq()("buffer_load_dword %s, %s, %s, %s offen offset:%d" % (vr(raw + i), vSq, Q, sK1 if j else "0", 128 * i), tag="S%d" % j) for i in range(10)]
    if j:
        g[0].insert(0, I("s_mov_b32 %s, %d" % (sK1, 128 * 1280)))
    return g


def red32(q, a, t):
    for r in (8, 4, 2, 1):
        q("v_add_f32_dpp %s, %s, %s row_ror:%d row_mask:0xf bank_mask:0xf" % (vr(a), vr(a), vr(a), r))
    q("v_mov_b32 %s, %s" % (vr(t), vr(a)))
    q("v_permlane16_swap_b32 %s, %s" % (vr(a), vr(t)))
    q("v_add_f32 %s, %s, %s" % (vr(a), vr(a), vr(t)))


def unpack(q, dst, src, n):
    for p in range(n):
        q("v_lshlrev_b32 %s, 16, %s" % (vr(dst + 2 * p), vr(src + p)))
        q("v_and_b32 %s, 0xffff0000, %s" % (vr(dst + 2 * p + 1), vr(src + p)))


def stats(raw=SR, j=0):
    q = Seq()
    o = -60 * j
    X, A, B = SR + 10 + o, SR + 30 + o, SR + 32 + o
    q.wait(vm="S%d" % j)
    unpack(q, X, raw, 10)
    q("v_pk_add_f32 %s, %s, %s" % (vr(A, 2), vr(X, 2), vr(X + 2, 2)))
    for i in range(2, 10):
        q("v_pk_add_f32 %s, %s, %s" % (vr(A, 2), vr(A, 2), vr(X + 2 * i, 2)))
    q("v_add_f32 %s, %s, %s" % (vr(A), vr(A), vr(A + 1)))
    red32(q, A, A + 1)
    q("v_mul_f32 %s, 0x3acccccd, %s" % (vr(A), vr(A)))
    for i in range(10):
        q("v_pk_add_f32 %s, %s, %s op_sel_hi:[1,0] neg_lo:[0,1] neg_hi:[0,1]" % (vr(X + 2 * i, 2), vr(X + 2 * i, 2), vr(A, 2)))
    q("v_pk_mul_f32 %s, %s, %s" % (vr(B, 2), vr(X, 2), vr(X, 2)))
    for i in range(1, 10):
        q("v_pk_fma_f32 %s, %s, %s, %s" % (vr(B, 2), vr(X + 2 * i, 2), vr(X + 2 * i, 2), vr(B, 2)))
    q("v_add_f32 %s, %s, %s" % (vr(B), vr(B), vr(B + 1)))
    red32(q, B, B + 1)
    b = vr(B)
    q("v_mul_f32 %s, 0x3acccccd, %s" % (b, b))
    q("v_cvt_pk_bf16_f32 %s, 0, %s" % (b, b))
    q("v_add_f32 %s, 0x3727c5ac, %s" % (b, b))
    q("v_cvt_pk_bf16_f32 %s, 0, %s" % (b, b))
    q("v_sqrt_f32 %s, %s" % (b, b))
    q("v_cvt_pk_bf16_f32 %s, %s, %s" % (vr(A), vr(A), b))
    q("ds_write_b32 %s, %s offset:%d" % (vSs, vr(A), 32 * j))
    return q


def r_addr():
    q = Seq()
    q("s_cmp_ge_u32 %s, 108" % sFI)
    q("s_cselect_b32 %s, %s, 0" % (sT2, OOB))
    q("v_or_b32 %s, %s, %s" % (vR1, sT2, vL16))
    q("s_lshr_b32 %s, %s, 1" % (sT0, sFI))
    q("s_and_b32 %s, %s, 1" % (sT1, sFI))
    lin(q, sT2, [(sT0, 32 * 1280), (sT1, 640), (sW, 8 * 1280)])
    lin(q, "s10", [(sT0, 5120), (sT1, 216 * 5120), (sW, 54 * 5120)], W2R)
    q("v_lshrrev_b32 %s, 3, v0" % t0)
    q("v_mul_u32_u24 %s, 1280, %s" % (t1, t0))
    q("v_and_b32 %s, 6, %s" % (t0, t0))
    q("v_xor_b32 %s, %s, v0" % (t0, t0))
    q("v_and_b32 %s, 7, %s" % (t0, t0))
    q("v_lshlrev_b32 %s, 4, %s" % (t0, t0))
    q("v_add3_u32 %s, %s, %s, %s" % (vR0, t0, t1, sT2))
    lin(q, "s22", [(sW, 1024)], F_RT)
    return q


def r_dma():
    g = []
    for lc in range(5):
        q = Seq()
        q("s_add_u32 m0, s22, %d" % (lc * (4096 - 128)))
        q("buffer_load_dwordx4 %s, %s, 0 offen offset:%d lds" % (vR0, W2, 128 * lc), tag="R")
        g.append(q)
    return g


def r_reads():
    q = Seq()
    q("v_lshrrev_b32 %s, 2, v0" % t0)
    q("v_mul_u32_u24 %s, 96, %s" % (t0, t0))
    q("v_bfe_u32 %s, v0, 3, 2" % t1)
    q("v_lshl_add_u32 %s, %s, 5, %s" % (t0, t1, t0))
    q("v_add_u32 %s, %s, %s" % (t0, t0, vL8))
    q("s_mul_i32 %s, %s, 160" % (sT0, sW))
    for c in range(5):
        if c:
            q("s_add_u32 %s, %s, 32" % (sT0, sT0))
        q("s_lshr_b32 %s, %s, 7" % (sT1, sT0))
        lin(q, sT1, [(sT1, 4096 - 128), (sT0, 1)])
        q("v_xor_b32 %s, %s, %s" % (t1, sT1, t0))
        q("v_add_u32 %s, %d, %s" % (t1, F_RT, t1))
        for j in range(2):
            q("ds_read_b64_tr_b16 %s, %s offset:%d" % (ar(4 * c + 2 * j, 2), t1, 2048 * j), tag="rr%d" % c)
    return q


def r_stores():
    q = Seq()
    for c in range(5):
        if c == 4:
            q("s_add_u32 s10, s10, 4096")
        q.wait(lg="rr%d" % c)
        q("buffer_store_dwordx4 %s, %s, %s, s10 offen offset:%d sc1" % (ar(4 * c, 4), vR1, WS, 1024 * (c & 3)), tag="Rst")
    return q


kH, kM, kT, kW, kR0, kR1, kL = (vr(KVA + i) for i in range(7))


def kv_addr0():
    q = Seq()
    lin(q, sT2, [(sW, 2 * 10240)])
    q("v_lshrrev_b32 %s, 5, v0" % t0)
    q("v_mul_u32_u24 %s, 10240, %s" % (t0, t0))
    q("v_add3_u32 %s, %s, %s, %s" % (kL, t0, vKF, sT2))
    return q


def kv_addr1(u):
    q = Seq()
    q("s_cmp_eq_u32 %s, 106" % sFI)
    q("s_cselect_b32 %s, %d, %d" % (sT0, u - 1, u))
    lin(q, sT1, [(sFI, 3), (sT0, 1)])
    q("s_mul_i32 %s, %s, 205" % (sT0, sT1))
    q("s_lshr_b32 %s, %s, 11" % (sT0, sT0))
    lin(q, sT1, [(sT1, 1), (sT0, -10)])
    lin(q, sT2, [(sT0, 81920), (sT1, 128)])
    q("v_add_u32 %s, %s, %s" % (kM, sT2, kL))
    q("s_lshl_b32 %s, %s, 9" % (sT2, sT1))
    q("v_lshl_add_u32 %s, %s, 2, %s" % (kT, vKF, sT2))
    q("v_subrev_u32 %s, 3840, %s" % (kH, kM))
    q("v_min_u32 %s, %s, %s" % (kH, OOB, kH))
    lin(q, sKV[u], [(sT1, 64 * RS), (sW, 16 * RS), (sT0, -128)], KVT + 31 * 128)
    return q


def kv_addr2(lds):
    q = Seq()
    q("v_lshrrev_b32 %s, 5, v0" % t0)
    q("s_lshl_b32 %s, %s, 1" % (sT2, sW))
    q("s_sub_u32 %s, 7, %s" % (sT2, sT2))
    q("v_sub_u32 %s, %s, %s" % (t0, sT2, t0))
    q("v_xor_b32 %s, %s, v0" % (t0, t0))
    q("v_and_b32 %s, 7, %s" % (t0, t0))
    q("v_lshlrev_b32 %s, 4, %s" % (t0, t0))
    q("v_lshl_add_u32 %s, %s, 6, %s" % (t0, vKF, t0))
    q("v_add_u32 %s, %d, %s" % (kW, lds, t0))
    q("v_and_b32 %s, 48, v0" % t0)
    q("v_xor_b32 %s, %s, %s" % (t0, t0, vL16))
    lin(q, sT2, [(sW, 2048)], lds)
    q("v_add_u32 %s, %s, %s" % (kR0, sT2, t0))
    q("v_xor_b32 %s, 64, %s" % (kR1, kR0))
    q("s_cmp_ge_u32 %s, 107" % sFI)
    q("s_cselect_b32 %s, %s, 0" % (sT2, OOB))
    q("v_or_b32 %s, %s, %s" % (vKS, sT2, vYO))
    lin(q, sFKR, [(sFI, 64)], FL_KR)
    return q


def kv_consts():
    return Seq()("s_mov_b32 %s, 5120" % sK1)


def kv_loads(b, tag):
    q = Seq()
    q("buffer_load_dwordx4 %s, %s, %s, 0 offen" % (vr(b + 20, 4), kT, SH), tag=tag)
    for j in range(3):
        q("buffer_load_dword %s, %s, %s, 0 offen offset:%d" % (vr(b + j), kH, K, 1280 * j), tag=tag)
    for srd, r in ((K, b + 3), (V, b + 11)):
        for j in range(8):
            q("buffer_load_dword %s, %s, %s, %s offen offset:%d" % (vr(r + j), kM, srd, sK1 if j > 3 else "0", 1280 * (j & 3)), tag=tag + ("k" if srd == K else ""))
    return q


def kv_compute(b, u, tag, KP=170, RES=140, WP=224):
    q = Seq()
    q.wait(vm=tag + "k")
    for i in range(4):
        for c in range(2):
            src = vr(b + 20 + 2 * c + (i >> 1))
            if i & 1:
                q("v_and_b32 %s, 0xffff0000, %s" % (vr(WP + 2 * i + c), src))
            else:
                q("v_lshlrev_b32 %s, 16, %s" % (vr(WP + 2 * i + c), src))
    unpack(q, KP, b, 11)
    for i in range(4):
        for j in range(8):
            kk = vr(KP + 2 * (j + 3 - i), 2)
            if i == 0:
                q("v_pk_mul_f32 %s, %s, %s" % (vr(RES + 2 * j, 2), kk, vr(WP, 2)))
            else:
                q("v_pk_fma_f32 %s, %s, %s, %s" % (vr(RES + 2 * j, 2), kk, vr(WP + 2 * i, 2), vr(RES + 2 * j, 2)))
    q.wait(vm=tag)
    unpack(q, KP, b + 11, 8)
    for j in range(8):
        q("v_pk_mul_f32 %s, %s, %s" % (vr(RES + 2 * j, 2), vr(RES + 2 * j, 2), vr(KP + 2 * j, 2)))
    for c in range(2):
        for e in range(4):
            q("v_cvt_pk_bf16_f32 %s, %s, %s" % (vr(b + 4 * c + e), vr(RES + 2 * (7 - 2 * e) + c), vr(RES + 2 * (6 - 2 * e) + c)))
        q("ds_write_b128 %s, %s offset:%d" % (kW, vr(b + 4 * c, 4), 128 * c + 8192 * u))
    return q


def kv_store(b, u):
    rd = Seq()
    rd("ds_read_b128 %s, %s offset:%d" % (vr(b, 4), kR0, 8192 * u), tag="kt%d" % (2 * u))
    rd("ds_read_b128 %s, %s offset:%d" % (vr(b + 4, 4), kR1, 8192 * u + 1024), tag="kt%d" % (2 * u + 1))
    st = []
    for i in range(2):
        h = Seq()
        if i:
            h("s_add_u32 %s, %s, %d" % (sKV[u], sKV[u], 8 * RS))
        h.wait(lg="kt%d" % (2 * u + i))
        h("buffer_store_dwordx4 %s, %s, %s, %s offen sc1" % (vr(b + 4 * i, 4), vKS, WS, sKV[u]), tag="kvst")
        st.append(h)
    return rd, st


def ssm_loads(b, r, tag):
    q = Seq()
    if r:
        q("s_add_u32 %s, %s, 8192" % (sSSM, sSSM))
    q("buffer_load_dwordx4 %s, %s, %s, %s offen" % (vr(b + 4, 4), vL16, SK, sSSM), tag=tag)
    q("buffer_load_dwordx4 %s, %s, %s, %s offen offset:1024" % (vr(b + 8, 4), vL16, SK, sSSM), tag=tag)
    return q


def d_load(HL):
    q = Seq()
    q("s_lshl_b32 %s, %s, 2" % (sT0, sPAIR))
    q("s_andn2_b32 %s, %s, 2048" % (sT1, sSSM))
    for r in range(len(HL)):
        q("s_load_dword %s, s[14:15], %s offset:%d" % (sDraw[r], sT0, 4 * r))
        q("s_load_dwordx2 s[%d:%d], s[48:49], %s offset:%d" % (HL[r], HL[r] + 1, sT1, 2040 + 8192 * r))
    return q


def d_select(HL):
    q = Seq()
    q("s_lshl_b32 %s, %s, 3" % (sT0, sW))
    for r in range(len(HL)):
        q("s_lshr_b32 %s, %s, %s" % (sDraw[r], sDraw[r], sT0))
        q("s_lshl_b32 %s, %s, 16" % (sDraw[r], sDraw[r]))
        q("s_andn2_b32 %s, %s, s80" % (sDraw[r], sDraw[r]))
        q("s_and_b64 s[%d:%d], s[%d:%d], %s" % (HL[r], HL[r] + 1, HL[r], HL[r] + 1, sHM))
    return q


def ssm_copies(b, r, tag, base, T, hl, narrow=False):
    q = Seq()
    q("v_add_u32 %s, %d, %s" % (t0, base, vCW))
    q("v_add_u32 %s, %d, %s" % (t1, base, vCZ))
    for e in range(4):
        q("v_mov_b32 %s, 0" % vr(T + 12 + e))
    q("ds_write_b128 %s, %s" % (t1, vr(T + 12, 4)))
    q("v_mov_b32 %s, 0" % t2)
    q("v_writelane_b32 %s, %s, 0" % (t2, sDraw[r]))
    for e in range(2):
        q("v_mov_b32 %s, s%d" % (vr(b + e), hl + e))
    q.wait(vm=tag)
    dpp = " row_mask:0xf bank_mask:0xf"
    for e in range(2):
        q("v_mov_b32_dpp %s, %s wave_ror:1" % (vr(b + 2 + e), vr(b + 6 + e)) + dpp)
    for e in range(2):
        q("v_mov_b32_dpp %s, %s wave_shr:1" % (vr(b + e), vr(b + 6 + e)) + dpp)
    for e in range(2):
        q("v_mov_b32_dpp %s, %s wave_shr:1" % (vr(b + 2 + e), vr(b + 10 + e)) + dpp)
    q("v_lshlrev_b32 %s, 16, %s" % (t1, vr(b + 4)))
    q("v_add_f32 %s, %s, %s" % (t1, t1, t2))
    q("v_and_b32 %s, 0xffff0000, %s" % (t2, vr(b + 4)))
    q("v_cvt_pk_bf16_f32 %s, %s, %s" % (vr(b + 4), t1, t2))
    for c in range(2):
        d = [None, None, b + 2 * c, b + 2 * c + 1] + [b + 4 + 4 * c + i for i in range(4)]
        q("ds_write_b128 %s, %s offset:%d" % (t0, vr(d[4], 4), 1024 * c + 3 * CPY))
        for e in range(4):
            q("v_alignbit_b32 %s, %s, %s, 16" % (vr(T + e), vr(d[3 + e]), vr(d[2 + e])))
        q("ds_write_b128 %s, %s offset:%d" % (t0, vr(T, 4), 1024 * c))
        for e in range(4):
            q("v_mov_b32 %s, %s" % (vr(T + 4 + e), vr(d[3 + e])))
        q("ds_write_b128 %s, %s offset:%d" % (t0, vr(T + 4, 4), 1024 * c + CPY))
        for e in range(4):
            q("v_alignbit_b32 %s, %s, %s, 16" % (vr(T + 8 + e), vr(d[4 + e]), vr(d[3 + e])))
        q("ds_write_b128 %s, %s offset:%d" % (t0, vr(T + 8, 4), 1024 * c + 2 * CPY))
    if narrow:
        o = Seq()
        for i in q:
            m = re.match(r"ds_write_b128 (\w+), v\[(\d+):\d+\](?: offset:(\d+))?", i.text)
            if m:
                for h in range(2):
                    o("ds_write_b64 %s, %s offset:%d" % (m.group(1), vr(int(m.group(2)) + 2 * h, 2), int(m.group(3) or 0) + 8 * h))
            else:
                o.append(i)
        return o
    return q


def ur_dma(base, tag):
    q = Seq()
    q("s_add_u32 m0, %s, %d" % (sURm, base))
    q("buffer_load_dwordx4 %s, %s, %s offen sc1 lds" % (vL16, WS, sUR), tag=tag)
    q("buffer_load_dwordx4 %s, %s, %s offen offset:1024 sc1 lds" % (vL16, WS, sUR), tag=tag)
    return q


CA_B, CB_B, CACC = (136, 76), (168, 200), 44


BACC = [232, 236, 240, 244, 248, 252, 36, 40]


def conv_reads(n):
    a, b = CA_B[n & 1], CB_B[n & 1]
    ri = n if n < 4 else n - 4
    q = Seq()
    if n == 4:
        q("v_add_u32 %s, s70, %s" % (vA, vA))
        q("v_add_u32 %s, s71, %s" % (vB, vB))

    def ra(i):
        q("ds_read_b128 %s, %s offset:%d" % (vr(a + 4 * i, 4), vA, 512 * i + 64 * ri), tag="cA%d_%d" % (n, i))
    ra(0)
    for d in range(8):
        for h in range(2):
            q("ds_read_b64 %s, %s offset:%d" % (vr(b + 4 * d + 2 * h, 2), vB, 512 * (7 - d) + 64 * ri + 8 * h), tag="cB%d_%d" % (n, d))
    for i in range(1, 8):
        ra(i)
    return q


def conv_main(streams=(), puts=()):
    q = Seq()
    for n in range(12):
        a, b = CA_B[n & 1], CB_B[n & 1]
        if n:
            q.wait(lg="cA%d_7" % n)
            stamp(q, n + 1, "cv")
        for i in range(8):
            for d in range(8 - i):
                if n == 0:
                    q.wait(lg=("cA0_%d" % i, "cB0_%d" % d))
                acc = vr(BACC[i + d] if n < 4 else CACC + 4 * (i + d), 4)
                q("v_mfma_f32_16x16x32_bf16 %s, %s, %s, %s" % (acc, vr(a + 4 * i, 4), vr(b + 4 * d, 4), "0" if (n in (0, 4) and i == 0) else acc))
    for k, code in puts:
        q = put(q, k, code)
    for f, a, b in streams:
        q = fit(q, split(f), start=a, end=b)
    for n in range(11):
        q = fit(q, conv_reads(n + 1), start=36 * n + (6 if n == 0 else 0), end=36 * n + 34, front=True)
    print("conv overload", overload(q), file=sys.stderr)
    return q


def conv_tail_split(SND=108, PK=124):
    lo = [BACC[i >> 2] + (i & 3) for i in range(16)]
    hi = [BACC[4 + (i >> 2)] + (i & 3) for i in range(16)]
    out = Seq()
    for i in range(16):
        out("v_cndmask_b32 %s, %s, %s, %s" % (vr(SND + i), vr(hi[i]), vr(lo[i]), sHM))
        if i & 3 == 3:
            out("ds_write_b128 %s, %s offset:%d" % (vXW, vr(SND + i - 3, 4), 256 * (i - 3)), tag="cxw")
    for i in range(16):
        out("v_cndmask_b32 %s, %s, %s, %s" % (vr(lo[i]), vr(lo[i]), vr(hi[i]), sHM))
    bar = Seq().wait(lg="cxw")("s_barrier")
    ex = Seq()
    for k in range(4):
        ex("ds_read_b128 %s, %s offset:%d" % (vr(SND + 4 * k, 4), vXR, 1024 * k), tag="cx%d" % k)
    fin = Seq()
    for i in range(4):
        fin.wait(lg="cx%d" % i)
        for r in range(4):
            fin("v_add_f32 %s, %s, %s" % (vr(lo[4 * i + r]), vr(lo[4 * i + r]), vr(SND + 4 * i + r)))
        for h in range(2):
            fin("v_cvt_pk_bf16_f32 %s, %s, %s" % (vr(PK + 2 * i + h), vr(lo[4 * i + 2 * h]), vr(lo[4 * i + 2 * h + 1])))
        fin("buffer_store_dwordx2 %s, %s, %s, %s offen offset:%d sc1" % (vr(PK + 2 * i, 2), vL8, WS, sYST, 512 * i), tag="yst0")
    return out, bar, ex, fin


def conv_tail_whole(PK=108):
    q = Seq()
    for i in range(8):
        for h in range(2):
            q("v_cvt_pk_bf16_f32 %s, %s, %s" % (vr(PK + 2 * i + h), vr(CACC + 4 * i + 2 * h), vr(CACC + 4 * i + 2 * h + 1)))
        q("buffer_store_dwordx2 %s, v13, %s, %s offen offset:%d sc1" % (vr(PK + 2 * i, 2), WS, sYST, 512 * i), tag="yst")
    return q


def addr_conv2():
    q = Seq()
    sCS, sHF = sT0, sT1
    q("s_lshr_b32 %s, %s, 1" % (sCS, sW))
    q("s_and_b32 %s, %s, 1" % (sHF, sW))
    lin(q, "s70", [(sCS, CONV_SZ - 4 * CPY), (sHF, 4 * CPY - 256)], CONV_SZ)
    lin(q, "s71", [(sCS, CONV_SZ - RS), (sHF, RS - 256)], CONV_SZ)
    lin(q, "s76", [(sPAIR, 2 * RS), (sW, RS)], YT + 2 * RS)
    q("v_lshrrev_b32 %s, 5, v0" % vFLY)
    q("v_or_b32 %s, %s, %s" % (vFLY, sW, vFLY))
    q("v_min_u32 %s, 1, %s" % (vFLY, vFLY))
    q("v_lshl_or_b32 %s, %s, 31, %s" % (vFLY, vFLY, vKF))
    q("v_mov_b32 v13, %s" % vL8)
    return q


G1ACC, G1CS, G1ONE, G1F = 36, 216, 132, 136


def g1_roles():
    q = Seq()
    q("s_and_b32 %s, %s, 3" % (sT0, sLI))
    q("s_lshr_b32 %s, %s, 2" % (sT1, sLI))
    q("s_cmp_ge_u32 %s, 16" % sLI)
    q("s_cselect_b32 %s, %s, 0" % (sT2, sCH))
    lin(q, sRB, [(sRG, 4), (sT0, 1), (sT2, 2)])
    lin(q, sCB, [(sCH, 5), (sT1, 1), (sT2, -5)])
    if O.rot:
        q("s_and_b32 %s, %s, 3" % (sT0, sRB))
        if O.rot == 1:
            lin(q, sT0, [(sT0, 5), (sT1, 4)])
            q("s_lshr_b32 %s, %s, 1" % (sT0, sT0))
            q("s_sub_u32 %s, %s, 10" % (sT1, sT0))
            q("s_cselect_b32 %s, %s, %s" % (sT0, sT0, sT1))
        else:
            q("s_xor_b32 %s, %s, %s" % (sT0, sT0, sT1))
            q("s_and_b32 %s, %s, 1" % (sT0, sT0))
            q("s_mul_i32 %s, %s, 5" % (sT0, sT0))
        q("s_lshl_b32 %s, %s, 7" % (sXO, sT0))
    return q


def g1_dma_addr():
    q = Seq()
    lin(q, sT0, [(sRB, 128 * 1280), (sW, 32 * 1280)])
    q("v_lshrrev_b32 %s, 3, v0" % t0)
    q("v_mul_u32_u24 %s, 1280, %s" % (t0, t0))
    q("v_lshrrev_b32 %s, 4, v0" % t1)
    q("v_xor_b32 %s, %s, v0" % (t2, t1))
    q("v_and_b32 %s, 7, %s" % (t2, t2))
    q("v_lshlrev_b32 %s, 4, %s" % (t2, t2))
    q("v_add3_u32 v1, %s, %s, %s" % (t0, t2, sT0))
    q("v_xor_b32 v2, 64, v1")
    q("v_add_u32 v2, %d, v2" % (10240 - 1024))
    q("v_add_u32 v3, %d, v1" % (2 * (10240 - 1024)))
    q("v_add_u32 v4, %d, v2" % (2 * (10240 - 1024)))
    lin(q, sT0, [(sW, 16 * 3456), (sCB, 384)])
    q("v_lshrrev_b32 %s, 3, v0" % t0)
    q("v_mul_u32_u24 %s, 3456, %s" % (t1, t0))
    q("v_and_b32 %s, 2, %s" % (t0, t0))
    q("v_xor_b32 %s, %s, v0" % (t0, t0))
    q("v_and_b32 %s, 7, %s" % (t0, t0))
    q("v_lshlrev_b32 %s, 4, %s" % (t0, t0))
    q("v_add3_u32 v5, %s, %s, %s" % (t0, t1, sT0))
    q("v_xor_b32 v6, 64, v5")
    q("v_add_u32 v6, %d, v6" % (8 * 3456 - 1024))
    q("s_lshl_b32 %s, %s, 11" % (sMW, sW))
    lin(q, sMX, [(sW, 4096)], L_XR)
    return q


def c_addr():
    q = Seq()
    q("s_sub_u32 %s, %s, 18" % (sT1, sLI))
    lin(q, sT1, [(sT1, 1), (sCH, 14)])
    lin(q, sT0, [(sRG, 160 * 3456), (sW, 40 * 3456), (sT1, 128)])
    q("s_cmp_ge_u32 %s, 27" % sT1)
    q("s_cselect_b32 %s, %s, %s" % (sT0, OOB, sT0))
    q("s_and_b32 %s, %s, 1" % (sT2, sW))
    q("s_lshl_b32 %s, %s, 2" % (sT2, sT2))
    q("v_lshrrev_b32 %s, 3, v0" % t0)
    q("v_mul_u32_u24 %s, 3456, %s" % (t1, t0))
    q("v_and_or_b32 %s, %s, 2, %s" % (t0, t0, sT2))
    q("v_xor_b32 %s, %s, v0" % (t0, t0))
    q("v_and_b32 %s, 7, %s" % (t0, t0))
    q("v_lshlrev_b32 %s, 4, %s" % (t0, t0))
    q("v_add3_u32 v11, %s, %s, %s" % (t0, t1, sT0))
    q("v_xor_b32 v12, 64, v11")
    lin(q, "s91", [(sRG, 1792 * 4), (sT1, 256), (sW, 64)], CSUM)
    return q


def c_dma():
    q = Seq()
    q("s_mul_i32 %s, %s, 5120" % (sK2, sW))
    for i in range(5):
        q("s_add_u32 m0, %s, %d" % (sK2, F_CT + 1024 * i))
        q("s_mov_b32 %s, %d" % (sK1, 8 * 3456 * i))
        q("buffer_load_dwordx4 %s, %s, %s offen lds" % ("v12" if i & 1 else "v11", W1, sK1), tag="C")
    return q


def c_sum():
    q = Seq()
    q("v_lshrrev_b32 %s, 4, v0" % t1)
    q("v_bfe_u32 %s, v0, 2, 2" % t0)
    q("v_lshl_add_u32 %s, %s, 3, %s" % (t0, t1, t0))
    q("v_and_b32 %s, 24, %s" % (t2, vL8))
    q("v_lshl_add_u32 %s, %s, 7, %s" % (t0, t0, t2))
    q("v_bfe_u32 %s, v0, 3, 2" % t2)
    q("v_xor_b32 %s, %s, %s" % (t2, sW, t2))
    q("v_lshl_add_u32 %s, %s, 5, %s" % (t0, t2, t0))
    q("v_add_u32 %s, %d, %s" % (t0, F_CT, t0))
    for k in range(5):
        for j in range(2):
            q("ds_read_b64_tr_b16 %s, %s offset:%d" % (ar(32 + 4 * k + 2 * j, 2), t0, 4096 * k + 512 * j), tag="cr%d" % k)
    for i in range(4):
        q("v_mov_b32 %s, 0x3f803f80" % vr(36 + i))
    q("v_min_u32 %s, 1, %s" % (t0, vN64))
    q("v_and_b32 %s, 48, v0" % t1)
    q("v_lshl_or_b32 v11, %s, 31, %s" % (t0, t1))
    m = Seq()
    for k in range(5):
        m.wait(lg="cr%d" % k)
        m("v_mfma_f32_16x16x32_bf16 v[40:43], %s, v[36:39], %s" % (ar(32 + 4 * k, 4), "v[40:43]" if k else "0"))
    st = Seq()("buffer_store_dwordx4 v[40:43], v11, %s, s91 offen sc1" % WS, tag="Rst")
    return q, m, st


def touch_addr():
    q = Seq()
    rq = (640 - O.k0) // 4
    rows = (rq + 17) // 18
    assert rows <= 8
    lin(q, sT0, [(sRG, rq * 3456), (sLI, rows * 3456), (sW, 3456), (sCH, 1792)], O.k0 * 3456)
    q("v_lshrrev_b32 %s, 4, v0" % t0)
    q("v_mul_u32_u24 %s, %d, %s" % (t0, 4 * 3456 - 2048, t0))
    q("v_lshl_add_u32 %s, v0, 7, %s" % (t0, t0))
    q("v_add_u32 v251, %s, %s" % (sT0, t0))
    q("s_add_u32 %s, %s, 4" % (sT0, sW))
    q("s_cmp_lt_u32 %s, %d" % (sT0, rows))
    q("s_cselect_b32 s90, 0x3fff0000, 0")
    q("s_or_b32 s90, s90, 0x3fff")
    if O.gt > 1:
        lin(q, sT0, [(sXCD, 256 * 1280), (sLI, 1280), (sW, 32 * 1280)], 130 * 1280 + 256)
        q("s_cmp_ge_u32 %s, 14" % sLI)
        q("s_cselect_b32 %s, %s, %s" % (sT0, OOB, sT0))
        q("v_lshrrev_b32 %s, 3, v0" % t0)
        q("v_mul_u32_u24 %s, %d, %s" % (t0, 16 * 1280 - 1024, t0))
        q("v_lshl_add_u32 %s, v0, 7, %s" % (t0, t0))
        q("v_add_u32 v250, %s, %s" % (sT0, t0))
    return q


def touch():
    q = Seq()
    q("s_mov_b32 exec_lo, s90")
    q("s_mov_b32 exec_hi, 0")
    q("buffer_load_dword a254, v251, %s, 0 offen" % W1)
    if O.gt > 1:
        q("s_mov_b32 exec_lo, 0xffff")
        q("buffer_load_dword a253, v250, %s, 0 offen" % Q)
    q("s_mov_b64 exec, -1")
    return q


def g1_dma(s):
    slot = s % 3
    g = []
    for lc in range(3):
        h = Seq()
        h("s_add_u32 m0, %s, %d" % (sMW, L_WR + slot * 24576 + lc * 8192))
        if not O.rot:
            h("s_mov_b32 %s, %d" % (sWO, s * 64 * 3456 + lc * 128))
        elif lc:
            h("s_add_u32 %s, %s, 128" % (sWO, sWO))
        else:
            if s:
                h("s_add_u32 %s, %s, 128" % (sXO, sXO))
                h("s_cmp_eq_u32 %s, 1280" % sXO)
                h("s_cselect_b32 %s, 0, %s" % (sXO, sXO))
            h("s_mul_i32 %s, %s, 1728" % (sWO, sXO))
        for i in range(2):
            h("buffer_load_dwordx4 %s, %s, %s offen offset:%d lds" % (vr(5 + i), W1, sWO, 1024 * i), tag="st%d" % s)
            g.append(h)
            h = Seq()
    h("s_add_u32 m0, %s, %d" % (sMX, slot * 16384))
    if not O.rot:
        h("s_movk_i32 %s, %d" % (sXO, s * 128))
    for i in range(4):
        h("buffer_load_dwordx4 %s, %s, %s offen offset:%d lds" % (vr(1 + i), Q, sXO, 1024 * i), tag="st%d" % s)
        g.append(h)
        h = Seq()
    return g


def g1_late_addr():
    q = Seq()
    sFW, sTW = sT0, sT1
    q("s_lshr_b32 %s, %s, 1" % (sFW, sW))
    q("s_and_b32 %s, %s, 1" % (sTW, sW))
    q("v_lshrrev_b32 %s, 4, v0" % t1)
    q("v_bfe_u32 %s, v0, 2, 2" % t0)
    q("v_lshl_add_u32 %s, %s, 3, %s" % (t0, t1, t0))
    q("v_and_b32 %s, 24, %s" % (t2, vL8))
    q("v_lshl_add_u32 %s, %s, 7, %s" % (t0, t0, t2))
    q("v_bfe_u32 %s, v0, 3, 2" % t2)
    q("v_lshl_add_u32 %s, %s, 5, %s" % (t0, t2, t0))
    for f in range(6):
        lo, hi = (f >> 2) * 8192 + (f & 3) * 32, ((6 + f) >> 2) * 8192 + ((6 + f) & 3) * 32
        lin(q, sT2, [(sFW, hi - lo)], lo)
        q("v_xor_b32 %s, %s, %s" % (vr(7 + f), sT2, t0))
    q("v_bfe_u32 %s, v0, 1, 3" % t0)
    q("v_xor_b32 %s, %s, %s" % (t0, t0, t1))
    q("v_lshlrev_b32 %s, 4, %s" % (t0, t0))
    q("v_lshl_add_u32 %s, %s, 1, %s" % (t0, vN64, t0))
    lin(q, sT2, [(sTW, 8192)], L_XR)
    q("v_xor_b32 v13, %s, %s" % (sT2, t0))
    q("v_xor_b32 v134, 64, v13")
    q("s_mov_b32 s82, 0xbfb8aa3b")
    q("s_mov_b32 s83, 0xbfb8aa3b")
    lin(q, sST1, [(sRB, 1024), (sW, 256)], STATS)
    lin(q, sHST, [(sRB, 8 * HT), (sTW, 4 * HT), (sCB, 6144), (sFW, 3072)], HB)
    lin(q, sFH, [(sRB, 1024), (sCB, 64)], FL_H)
    return q


def g1_reads(n):
    st = n // 2
    b = G1F + 40 * (n & 1)
    q = Seq()

    def rx(t):
        q("ds_read_b128 %s, %s offset:%d" % (vr(b + 24 + 4 * t, 4), "v134" if n & 1 else "v13", (st % 3) * 16384 + t * 2048), tag="f%d_%d" % (n, t))
    rx(0)
    for f in range(6):
        for j in range(2):
            q("ds_read_b64_tr_b16 %s, %s offset:%d" % (vr(b + 4 * f + 2 * j, 2), vr(7 + f), (st % 3) * 24576 + (n & 1) * 4096 + j * 512), tag="f%d_w%d" % (n, f))
    for t in range(1, 4):
        rx(t)
    return q


def g1_mfma(n):
    b = G1F + 40 * (n & 1)
    q = Seq()
    for t in range(4):
        for f in range(6):
            if n == 0:
                q.wait(lg=("f%d_w%d" % (n, f), "f%d_%d" % (n, t)))
            acc = vr(G1ACC + 24 * t + 4 * f, 4)
            q("v_mfma_f32_16x16x32_bf16 %s, %s, %s, %s" % (acc, vr(b + 4 * f, 4), vr(b + 24 + 4 * t, 4), acc if n else "0"))
    return q


def g1_main(pre_bar, post_bar, extra):
    q = Seq()

    def bar(b):
        q.add(pre_bar.get(b, []))
        q.wait(vm="st%d" % b if b < 10 else None, lg=0)
        q("s_barrier")
        stamp(q, b + 1, "g1")
        if b in (0, 1, 3, 8):
            stamp(q, {0: 2, 1: 3, 3: 4, 8: 5}[b])
        q.add(post_bar.get(b, []))
    for n in range(20):
        if n == 0:
            bar(n // 2)
            q.add(g1_reads(n))
        elif n % 2 and n < 19:
            bar(n // 2 + 1)
        else:
            q.wait(lg="f%d_3" % n)
        q.add(g1_mfma(n))
    for n in range(20):
        a = 24 * n
        for f in extra.get(n, []):
            q = fit(q, split(f), start=a, end=a + 24)
        if n < 19:
            q = fit(q, g1_reads(n + 1), start=a + (3 if n == 0 else 0), end=a + 22, front=True)
    print("gemm1 overload", overload(q), file=sys.stderr)
    return q


def g1_cs():
    a = Seq()
    lin(a, sT0, [(sCB, 768), (sW, 192)], CSUM)
    a("v_min_u32 %s, 47, v0" % t0)
    a("v_lshlrev_b32 %s, 2, %s" % (t0, t0))
    for k in range(4):
        if k:
            a("s_add_u32 %s, %s, %d" % (sT0, sT0, 1792 * 4))
        a("buffer_load_dword %s, %s, %s, %s offen sc1" % (vr(G1CS + k), t0, WS, sT0), tag="cs")
    lin(a, sT0, [(sW, 192)], L_CS)
    a("v_add_u32 %s, %s, %s" % (t0, sT0, t0))
    b = Seq()
    b.wait(vm="cs")
    for k in range(1, 4):
        b("v_add_f32 %s, %s, %s" % (vr(G1CS), vr(G1CS), vr(G1CS + k)))
    b("ds_write_b32 %s, %s" % (t0, vr(G1CS)))
    c = Seq()
    c("s_lshr_b32 %s, %s, 1" % (sT0, sW))
    lin(c, sT0, [(sT0, 384)], L_CS)
    c("v_and_b32 %s, 48, v0" % t0)
    c("v_add_u32 %s, %s, %s" % (t0, sT0, t0))
    for f in range(6):
        c("ds_read_b128 %s, %s offset:%d" % (vr(G1CS + 4 * f, 4), t0, 64 * f), tag="csr")
    return a, b, c


STR, STP = 240, 244


def g1_stat_poll():
    def issue(q):
        q("buffer_load_dword v252, v253, %s, %s offen sc1" % (WS, sST1), tag="gr")

    def check(q):
        q("v_cmp_ne_u32 vcc, %s, v252" % sTAG)
        q("s_and_b32 vcc_lo, vcc_lo, 0xff00ff00")
        q("s_and_b32 vcc_hi, vcc_hi, 0xff00ff00")
        q("s_or_b64 vcc, vcc, 0")
    a = Seq()
    a("v_lshlrev_b32 v253, 2, v0")
    issue(a)
    lin(a, sT0, [(sW, 256)], L_ST)
    a("v_add_u32 v254, %s, v253" % sT0)
    b = Seq()
    b.wait(vm="gr")
    spin(b, issue, check)
    b("ds_write_b32 v254, v252")
    return a, b


def g1_stat_reads():
    q = Seq()
    q("s_and_b32 %s, %s, 1" % (sT0, sW))
    lin(q, sT0, [(sT0, 16)], L_ST)
    q("v_add_u32 %s, %s, %s" % (t2, sT0, vN64))
    q("ds_read_b128 %s, %s" % (vr(STR, 4), t2), tag="sr")
    return q


def g1_stat_prep():
    q = Seq()
    q.wait(lg="sr")
    for t in range(4):
        q("v_and_b32 %s, 0xffff0000, %s" % (vr(STP + 2 * t), vr(STR + t)))
    for t in range(4):
        q("v_rcp_f32 %s, %s" % (vr(STP + 2 * t), vr(STP + 2 * t)))
    for t in range(4):
        q("v_lshlrev_b32 %s, 16, %s" % (vr(STP + 1 + 2 * t), vr(STR + t)))
    for t in range(4):
        q("v_mul_f32 %s, s82, %s" % (vr(STP + 2 * t), vr(STP + 2 * t)))
    return q


def g1_epilogue():
    blocks = []
    for n in range(12):
        t, k = n // 3, n % 3
        b = Seq()
        a = G1ACC + 8 * n
        st = vr(STP + 2 * t, 2)
        e = 200 + 8 * (n & 1)
        for p in range(4):
            b("v_pk_fma_f32 %s, %s, %s, %s op_sel:[0,1,0] op_sel_hi:[1,1,1] neg_lo:[0,1,0] neg_hi:[0,1,0]" % (vr(a + 2 * p, 2), vr(G1CS + 8 * k + 2 * p, 2), st, vr(a + 2 * p, 2)))
        for p in range(4):
            b("v_pk_mul_f32 %s, %s, %s op_sel_hi:[1,0]" % (vr(a + 2 * p, 2), vr(a + 2 * p, 2), st))
        for p in range(8):
            b("v_exp_f32 %s, %s" % (vr(e + p), vr(a + p)))
        for p in range(4):
            b("v_pk_fma_f32 %s, %s, %s, %s" % (vr(e + 2 * p, 2), vr(e + 2 * p, 2), sNL, sNL))
        for p in range(8):
            b("v_rcp_f32 %s, %s" % (vr(e + p), vr(e + p)))
        for p in range(4):
            b("v_pk_mul_f32 %s, %s, %s" % (vr(a + 2 * p, 2), vr(a + 2 * p, 2), vr(e + 2 * p, 2)))
        o = (132, 240)[n & 1]
        if t and k == 0:
            b("s_add_u32 %s, %s, %d" % (sHST, sHST, HT))
        for p in range(4):
            b("v_cvt_pk_bf16_f32 %s, %s, %s" % (vr(o + p), vr(a + 2 * p), vr(a + 2 * p + 1)))
        b("buffer_store_dwordx4 %s, %s, %s, %s offen offset:%d sc1" % (vr(o, 4), vL16, WS, sHST, 1024 * k), tag="hst")
        blocks.append(b)
    return blocks


def w2reg(i):
    return ar(4 * i, 4) if i < 64 else vr(232 + 4 * (i - 64), 4)


def w2_loads():
    g = []
    for i in range(70):
        h = Seq()
        if i and i % 4 == 0:
            h("s_add_u32 %s, %s, 4096" % (sW2B, sW2B))
        if "now2" not in O.x:
            h("buffer_load_dwordx4 %s, %s, %s, %s offen offset:%d sc1" % (w2reg(i), vL16x if i >= 60 else vL16, Q if "w2hit" in O.x else WS, sW2B, 1024 * (i % 4)), tag="w2")
        g.append(h)
    return g


G2ACC, G2H, NH = (76, 44), 136, 16
LOOK = O.look
XF, PS, PT, RAW, CST = 96, 116, 200, 2, 228
XN = list(range(64, 76)) + list(range(220, 228))


def h_load(n):
    i, k = n // 14, n % 14
    h = Seq()
    if k and k % 4 == 0:
        h("s_add_u32 %s, %s, 4096" % (sH[i], sH[i]))
    if "noh" not in O.x:
        h("buffer_load_dwordx4 %s, %s, %s, %s offen offset:%d sc1" % (vr(G2H + 4 * (n % NH), 4), vL16x if k >= 12 else vL16, Q if "hhit" in O.x else WS, sH[i], 1024 * (k % 4)), tag="h%d" % n)
    return h


def x_dma():
    g = []
    for i in range(3):
        q = Seq()
        q("s_add_u32 m0, %s, %d" % (sXm, 1024 * i))
        q("buffer_load_dwordx4 %s, %s, 0 offen lds" % (vXO[i], Q), tag="xt")
        g.append(q)
    return g


def h_start():
    q = Seq()
    q.wait(vm="pH")
    stamp(q, 6, "gap")
    spin(q, H_ISSUE, H_CHECK)
    stamp(q, 7, "gap")
    stamp(q, 9)
    ld = [Seq()("buffer_load_dword v12, %s, %s, %s offen sc1" % (vN64, WS, sST2), tag="xt")]
    return q, ld + [h_load(n) for n in range(O.pre)]


def no_conv(behind=()):
    q = Seq()
    q("v_bfrev_b32 %s, 1" % vFLY)
    q("v_bfrev_b32 v13, 1")
    q("s_mov_b32 %s, 0" % sFY)
    q("s_mov_b32 %s, 0" % sYST)
    H_ISSUE(q)
    q.add(flat(behind))
    stamp(q, 5, "gap")
    stamp(q, 8)
    chk, ld = h_start()
    return q.add(chk).add(flat(ld))


def y_dma():
    g = []
    for i in range(3):
        q = Seq()
        q("s_add_u32 m0, %s, %d" % (sYm, 4096 * i))
        if i:
            q("s_add_u32 %s, %s, %d" % (sYo, sYo, 32 * RS))
        else:
            q("s_lshl_b32 %s, %s, 30" % (sT1, sW))
        if i == 2:
            q("v_and_or_b32 %s, %s, %s, %s" % (vYO, sT1, t2, vYO))
        q("buffer_load_dwordx4 %s, %s, %s offen sc1 lds" % (vYO, WS, sYo), tag="yt")
        if i == 0:
            q("v_bfrev_b32 %s, 1" % t2)
        g.append(q)
    return g


def g2_main(at, fills, last):
    q = Seq()

    def mf(n, c):
        i, k = n // 14, n % 14
        acc = vr(G2ACC[i & 1] + 4 * c, 4)
        q("v_mfma_f32_16x16x32_bf16 %s, %s, %s, %s" % (acc, w2reg(5 * k + c), vr(G2H + 4 * (n % NH), 4), acc if (k or i > 1) else "0"))
    for n in range(56 - O.cm):
        q.add(at.get(n, []))
        q.wait(vm="h%d" % n, lg="init%d" % (n // 14) if n in (28, 42) else None)
        for c in range(5):
            mf(n, c)
    q.wait(vm="h55")
    for c in range(5):
        for n in range(56 - O.cm, 56):
            mf(n, c)
    nxt = O.pre
    for n in range(56):
        want = min(56, n + 1 + min(LOOK, O.pre + (n + 2) // O.ramp))
        if want > nxt:
            q = fit(q, split([h_load(j) for j in range(nxt, want)]), start=5 * n, end=5 * n + (3 if want == nxt + 1 else 5))
            nxt = want
    for i in range(1, 1 if "nospill" in O.x else 4):
        f = Seq()("v_add_u32 %s, %s, %s" % (t0, sPW[i - 1], vL16))
        if O.spill == 64:
            for c in range(10):
                f("ds_write_b64 %s, %s offset:%d" % (t0, vr(G2ACC[(i - 1) & 1] + 2 * c, 2), 1024 * (c >> 1) + 8 * (c & 1)))
        else:
            for c in range(5):
                f("ds_write_b128 %s, %s offset:%d" % (t0, vr(G2ACC[(i - 1) & 1] + 4 * c, 4), 1024 * c))
        q = fit(q, f, start=70 * i + 2, end=70 * i + 18)
    for m0, m1, f in fills:
        q = fit(q, split(f), start=m0, end=m1)
    tail = Seq()
    for c in range(5):
        m0 = 280 - O.cm * (4 - c) + 2
        if O.cm and m0 + 2 < 280:
            q = fit(q, atoms(last[c]), start=m0, end=min(280, m0 + O.cm + 1), front=True)
        else:
            tail.add(last[c])
    print("gemm2 overload", overload(q), file=sys.stderr)
    return q.add(tail)


def g2_init(i):
    q = Seq()
    a = vPR
    if i == 2:
        a = t0
        q("v_add_u32 %s, %s, %s" % (t0, sPW[2], vL16))
        q("v_subrev_u32 %s, 10240, %s" % (t0, t0))
    for c in range(5):
        q("ds_read_b128 %s, %s offset:%d" % (vr(G2ACC[i & 1] + 4 * c, 4), a, 5120 * (i - 2) + 1024 * c), tag="init%d" % i)
    return q


def gap(n):
    return [Seq() for _ in range(n)]


def g2_xpart():
    q = Seq()
    q.wait(vm="xt")
    for c in range(5):
        q("ds_read_b64 %s, %s offset:%d" % (vr(RAW + 2 * c, 2), vXT, 32 * c), tag="xr")
    q("v_and_b32 %s, 0xffff0000, v12" % vr(CST))
    q("v_rcp_f32 %s, %s" % (vr(CST), vr(CST)))
    q("v_lshlrev_b32 %s, 16, v12" % vr(CST + 1))
    q("v_mul_f32 %s, %s, -%s" % (vr(CST + 1), vr(CST), vr(CST + 1)))
    r = Seq()
    r.wait(lg="xr")
    unpack(r, PS, RAW, 10)
    for p in range(20):
        r("v_fma_f32 %s, %s, %s, %s" % (vr(XN[p]), vr(PS + p), vr(CST), vr(CST + 1)))
    return q, r


def g2_part(j):
    q = Seq()
    for c in range(5):
        q("ds_read_b128 %s, %s offset:%d" % (vr(PT + 4 * c, 4), vPR, 5120 * j + 1024 * c), tag="p%d" % j)
    r = Seq()
    r.wait(lg="p%d" % j)
    for p in range(20):
        r("v_add_f32 %s, %s, %s" % (vr(PS + p), vr(PS + p), vr(PT + p)))
    return q, r


def g2_ypart():
    q = Seq()
    for c in range(5):
        q("ds_read_b64_tr_b16 %s, %s offset:%d" % (vr(RAW + 2 * c, 2), vYT, 2048 * c), tag="yr")
    r = Seq()
    r.wait(lg="yr")
    unpack(r, XF, RAW, 10)
    for p in range(20):
        r("v_fmac_f32 %s, %s, %s" % (vr(PS + p), vr(XN[p]), vr(XF + p)))
    return q, r


def g2_last():
    acc = G2ACC[1]
    out = []
    for c in range(5):
        q = Seq()
        for r in range(4):
            q("v_add_f32 %s, %s, %s" % (vr(PS + 4 * c + r), vr(acc + 4 * c + r), vr(PS + 4 * c + r)))
        for h in range(2):
            q("v_cvt_pk_bf16_f32 %s, %s, %s" % (vr(XF + 2 * c + h), vr(PS + 4 * c + 2 * h), vr(PS + 4 * c + 2 * h + 1)))
        q("ds_write_b64 %s, %s offset:%d" % (vXT, vr(XF + 2 * c, 2), 32 * c))
        out.append(q)
    return out


def g2_final():
    q = Seq()
    for i in range(3):
        q("ds_read_b128 %s, %s offset:%d" % (vr(PT + 4 * i, 4), vOL, 1024 * i), tag="o%d" % i)
    for i in range(3):
        q.wait(lg="o%d" % i)
        q("buffer_store_dwordx4 %s, %s, %s, 0 offen" % (vr(PT + 4 * i, 4), vXO[i], OUT))
    return q


def put(seq, idx, code):
    return weave(seq, [code], start=idx, end=idx + 1, is_slot=is_mfma)


H_ISSUE, H_CHECK = poll(1, 34, vHF, sPH, "pH")


HL0 = 6


def role_g():
    q = Seq()
    e = Seq()
    e.add(s_addr())
    e.add(g1_roles())
    e.add(g1_dma_addr())
    if O.gt:
        e.add(touch_addr())
    q.add(early(e))
    q.wait(lg=0)
    stamp(q, 1, "f0")
    q.add(srd_ptrs(["Q", "W1", "WS"]))
    q.add(tag_load())
    d = {st: g1_dma(st) for st in range(10)}
    q.add(flat(s_loads()))
    q.add(flat(s_loads(SR - 60, 1)))
    if O.gt and O.tpos == 0:
        q.add(touch())
    q.add(flat(d[0][:O.a2]))
    q("L_G1:")
    stamp(q, 2, "f0")
    q.add(srd_ptrs(["OUT"]))
    q.add(addr_min())
    q.add(g1_late_addr())
    q.add(warm("G"))
    q.add(tag_ready())
    q.add(flat(d[0][O.a2:]))
    if O.gt and O.tpos == 1:
        q.add(touch())
    stamp(q, 1)
    stamp(q, 3, "f0")
    q.wait(vm="S1")
    stamp(q, 4, "f0")
    q.add(weave(flat(mix(list(stats()), list(stats(SR - 60, 1)))), d[1][:O.a1], start=2))
    stamp(q, 5, "f0")
    q.wait(lg=0)
    q("s_barrier")
    rd, sto = stats_out(t3)
    q.add(rd).add(sto)
    stamp(q, 6, "f0")
    q.add(flat(d[1][O.a1:]))
    stamp(q, 7, "f0")
    pre, post, extra = {}, {}, {n: [] for n in range(20)}
    rest = d[2] + d[3] + d[4]
    for i in range(5):
        extra[i] = [rest[6 * i:6 * i + 6]]
    for st in range(5, 10):
        extra[2 * st - 5], extra[2 * st - 4] = [d[st][:5]], [d[st][5:]]
    pa, pb = quarter_poll(FL_KR if O.one else FL_R, 28, "v255", T3, "pR")
    extra[2 * O.rb - 3][0] = [pa] + extra[2 * O.rb - 3][0]
    pre[O.rb] = pb
    w2 = w2_loads()
    sa, sb = g1_stat_poll()
    ca, cb, cc = g1_cs()
    f = w2[:O.n1]
    cnt = [0] + [O.n1 * x // 28 for x in (3, 9, 15, 21, 28)]
    for i in range(5):
        extra[15 + i] = [f[cnt[i]:cnt[i + 1]]]
    extra[15][0] = [sa, ca] + extra[15][0]
    pre[9] = flat([sb, cb])
    extra[17].append([g1_stat_reads()])
    extra[18].append([g1_stat_prep(), cc[:-6]])
    extra[19].append([cc[-6:]] + gap(3))
    la = atoms(flat([addr_w2(), addr_g2()]))
    n1 = 2 * O.rb - 3
    for n in range(3, n1):
        extra[n].append(la[len(la) * (n - 3) // (n1 - 3):len(la) * (n - 2) // (n1 - 3)])
    q.add(g1_main(pre, post, extra))
    stamp(q, 12, "g1")
    stamp(q, 6)
    k = O.n1 + O.ne
    assert k <= 64
    q.wait(lg="csr")
    q.add(weave(flat(g1_epilogue()), w2[O.n1:k]))
    stamp(q, 7)
    stamp(q, 1, "gap")
    q.add(flat(w2[k:k + O.np]))
    stamp(q, 2, "gap")
    q.wait(vm="hst")
    stamp(q, 3, "gap")
    q.add(publish("hst", sFH))
    stamp(q, 4, "gap")
    rest = x_dma() + w2[k + O.np:]
    q.add(flat(rest[:len(rest) - O.nq]))
    q.add(no_conv(rest[len(rest) - O.nq:]))
    return q


def shared():
    q = Seq()
    q("L_shared:")
    stamp(q, 10)
    xa, xb = g2_xpart()
    at = {}
    fills = [(O.fin0, O.fin, [conv_tail_whole()]), (45, 55, [xa]), (O.xb, O.xb + 45, [xb])]
    at[O.ypub] = publish("yst", sFY, vFLY)
    stamp(at[O.ypub], 11)
    for i in (2, 3):
        n = 14 * i - 6
        assert n not in at
        at[n] = Seq().wait(lg=0)("s_barrier")
        fills.append((5 * n, 5 * n + 10, [g2_init(i)]))
    iss, chk = poll(1, 34, vYF, sPY, "pY")
    iss(at.setdefault(O.ypoll, Seq()))
    h = Seq()
    stamp(h, 12)
    h.wait(vm="pY")
    spin(h, iss, chk)
    n = O.ypoll + O.ychk
    at.setdefault(n, Seq()).add(h)
    fills.append((5 * n, 5 * n + 10, y_dma()))
    at[O.ybar] = Seq().wait(vm="yt", lg=0)("s_barrier")
    a, b = g2_part(2)
    ya, yb = g2_ypart()
    m = 5 * O.ybar
    fills += [(m, m + 10, [ya, a]), (m + 9, 280 - 4 * O.cm + 2, [yb, b])]
    if "nofill" in O.x:
        fills = []
    if "noat" in O.x:
        at = {6: Seq(), 38: Seq()}
        stamp(at[6], 11)
        stamp(at[38], 12)
    if O.sp == "g2":
        for j, n in enumerate(range(0, 56, 4)):
            h = Seq()
            stamp(h, j + 1, "g2")
            at[n] = flat([h, at.get(n, [])])
    q.add(g2_main(at, fills, g2_last()))
    stamp(q, 13)
    q.add(g2_final())
    if O.stamps:
        stamp(q, 14)
        q.wait(vm=0)
        stamp(q, 15)
        lin(q, sT0, [("s2", 256), (sW, 64)], STAMP)
        q("v_lshlrev_b32 v2, 2, v0")
        q("s_mov_b64 exec, 0xffff")
        q("buffer_store_dword %s, v2, %s, %s offen" % (vSTP, WS, sT0))
    if O.leak:
        q("v_readlane_b32 s4, %s, 0" % vSTP)
        q("v_readlane_b32 s5, %s, %d" % (vSTP, int(O.leak[1:])))
        q("s_nop 4")
        q("s_cmp_ge_u32 s2, %d" % NG)
        if O.leak[0] == "G":
            q("s_cselect_b32 s4, s4, s5")
        elif O.leak[0] == "F":
            q("s_cselect_b32 s5, s5, s4")
            q("s_cmp_ge_u32 s2, %d" % (NG + NF))
            q("s_cselect_b32 s4, s4, s5")
        else:
            q("s_mov_b32 s4, s5")
        q("L_leak:")
        q("s_memrealtime s[6:7]")
        q("s_waitcnt lgkmcnt(0)")
        q("s_sub_u32 s6, s6, s4")
        q("s_cmp_lt_u32 s6, 5000")
        q("s_cbranch_scc1 L_leak")
    q("s_endpgm")
    return q


def role_f():
    q = Seq()
    q("L_roleF:")
    KVR, SSR, HL = (44, 68, 92), (200, 212, 240), (72, 74, 82)
    e = Seq()
    e("s_sub_u32 %s, s2, %d" % (sFI, NG))
    e("s_mul_i32 %s, %s, 3" % (sPAIR, sFI))
    e("s_min_u32 %s, %s, 317" % (sPAIR, sPAIR))
    cf = O.ford == "c"
    if cf:
        e.add(c_addr())
    e.add(kv_addr0())
    e.add(kv_addr1(0))
    e.add(addr_ssm())
    q.add(early(e))
    q.wait(lg=0)
    stamp(q, 1, "f0")
    q.add(srd_ptrs(["W1", "Q", "K", "V", "SH", "WS", "SK"]))
    q.add(tag_load())
    q.add(d_load(HL))
    if cf:
        q.add(c_dma())
    q.add(kv_consts())
    kl = atoms(kv_loads(KVR[0], "kv0")) + [kv_addr1(1)] + atoms(kv_loads(KVR[1], "kv1")) + [kv_addr1(2)] + atoms(kv_loads(KVR[2], "kv2"))
    n0 = (20 if cf else 41) + O.k0x
    q.add(flat(kl[:n0]))
    q("L_F1:")
    stamp(q, 2, "f0")
    q.add(srd_ptrs(["W2", "OUT"]))
    q.add(addr_min())
    q.add(kv_addr2(F_KT))
    q.add(r_addr())
    q.add(warm("F"))
    n1 = max(n0, 41 + O.k2)
    q.add(flat(kl[n0:n1]))
    stamp(q, 1)
    stamp(q, 3, "f0")
    ssm = [ssm_loads(SSR[r], r, "ssm%d" % r) for r in range(3)]
    st = [kv_store(KVR[u], u) for u in range(3)]
    ca, cm, cs = c_sum()
    rl = r_dma()
    later = [kl[n1:] + rl[:O.r0], rl[O.r0:] + ssm[:O.m0] + st[0][1], gap(1) + st[1][1] + gap(1)]
    for u in range(3):
        stamp(q, 4 + 3 * u, "f0")
        q.wait(vm="kv%dk" % u)
        stamp(q, 5 + 3 * u, "f0")
        q.add(weave(kv_compute(KVR[u], u, "kv%d" % u), later[u], start=2, end=84))
        stamp(q, 6 + 3 * u, "f0")
        q.wait(vm="R" if u == 2 else None, lg=0)
        q("s_barrier")
        q.add(st[u][0])
        if u == 0:
            q.add(Seq(tag_ready()[1:])).add(d_select(HL))
        if u == 1:
            q.add(addr_copies())
    q.add(flat(st[2][1]))
    stamp(q, 2)
    stamp(q, 13, "f0")
    if not cf:
        q.add(c_addr()).add(c_dma())
    if not (cf and O.kf):
        q.add(flat(ssm[O.m0:]))
    q.add(r_reads())
    if cf and O.kf:
        q.add(ca).add(cm).wait(lg=0)
    elif cf:
        q.add(ca).add(r_stores()).add(cm)
        q.add(ur_pads([b + CA_SZ for b in F_B], t0, t1)).add(cs)
    else:
        q.add(ur_pads([b + CA_SZ for b in F_B], t0, t1)).add(r_stores())
    stamp(q, 14, "f0")
    q.add(publish("kvst", sFKR))
    stamp(q, 3)
    if cf and O.kf:
        q.add(cs).add(r_stores()).add(flat(ssm[O.m0:])).add(ur_pads([b + CA_SZ for b in F_B], t0, t1))
    q("s_add_u32 %s, %s, %d" % (sFKR, sFKR, FL_R - FL_KR))
    cps = [ssm_copies(SSR[r], r, "ssm%d" % r, F_B[r], 44, HL[r]) for r in range(3)]
    if not cf:
        q.wait(vm="C")
        q("s_barrier")
        q.add(ca).add(cm).add(addr_w2()).add(cs)
    else:
        q.add(addr_w2())
    q.add(cps.pop(0))
    q.add(publish("Rst", sFKR))
    q("s_cmp_ge_u32 s2, %d" % (NG + NF))
    q("s_cbranch_scc1 L_roleR")
    front = Seq(q)
    pa, pb = quarter_poll(FL_KR, 28, vPL, 13, "pK")
    q.add(cps.pop(0))
    q.add(addr_conv(F_B[0], F_B[0] + CA_SZ, L_X))
    q.add(pa)
    if len(cps) == 2 or O.kp:
        q.add(cps.pop(0))
    stamp(q, 4)
    q.add(pb)
    q("s_barrier")
    stamp(q, 1, "f")
    for r in range(3):
        if r:
            q("s_add_u32 %s, %s, %d" % (sUR, sUR, 2 * RS))
        q.add(ur_dma(F_B[r] + CA_SZ, "ur%d" % r))
    pa, pb = quarter_poll(FL_R, 28, vPL, 12, "pR")
    q.add(Seq(pa[:-1]))
    q.add(flat(cps))
    stamp(q, 2, "f")
    q.wait(vm="ur0", lg=0)
    q("s_barrier")
    stamp(q, 5)
    stamp(q, 1, "cv")
    w2 = w2_loads()
    q.add(conv_reads(0))
    h = Seq()
    H_ISSUE(h)
    j = pb.wait(vm="ur2")("s_barrier")
    chk, ld = h_start()
    out, bar, ex, fin = conv_tail_split()
    fin("s_mov_b32 %s, s76" % sYST)
    pub = publish("yst0", sFY)("s_add_u32 %s, %s, 64" % (sFY, sFY))
    k = (144 - O.rchk) * 10 // O.wsp
    st6, st7 = Seq(), Seq()
    stamp(st6, 6)
    stamp(st7, 7)
    streams = [(w2[:k], O.rchk + 2, 144), ([addr_conv2(), addr_g2()], 2, 104), ([out], 148, 172), ([ex], 177, 183), ([fin], 190, 214),
               (w2[k:k + 3], 172, 190), (w2[k + 3:] + x_dma(), 214, O.hpoll), (ld, O.hchk + 1, 432)]
    puts = [(O.rpoll, Seq(pa[-1:])), (O.rchk, j), (143, st6), (176, bar), (O.ypub0, pub), (287, st7), (O.hpoll, h), (O.hchk, chk("s_barrier"))]
    assert O.hchk >= 396
    if O.weven:
        streams = [(w2 + x_dma(), O.rchk + 2, O.hpoll)] + streams[1:5] + streams[7:]
    q.add(conv_main(streams, puts))
    stamp(q, 13, "cv")
    stamp(q, 8)
    q("s_branch L_shared")
    return front, q


def role_r():
    q = Seq()
    q("L_roleR:")
    q.add(addr_g2())
    q.add(flat(x_dma()))
    pa, pb = quarter_poll(FL_KR if O.one else FL_R, 28, vPL, 34, "pR")
    q.add(pa).add(pb)
    q("s_barrier")
    stamp(q, 4)
    q.add(flat(w2_loads()))
    stamp(q, 5)
    e = lbl("noep")
    q("s_cmp_lg_u32 s2, 255")
    q("s_cbranch_scc1 %s" % e)
    lin(q, sT0, [(sW, 4096)], STATS + 32)
    q("v_min_u32 %s, 68, %s" % (vPL, vKF))
    q("v_lshrrev_b32 %s, 6, %s" % (t0, vPL))
    q("v_mul_u32_u24 %s, %d, %s" % (t0, STAT2 - STATS - 1024, t0))
    q("v_lshl_add_u32 %s, %s, 4, %s" % (vPL, vPL, t0))
    q("v_lshrrev_b32 %s, 5, v0" % t0)
    q("v_lshl_add_u32 %s, %s, 11, %s" % (vPL, t0, vPL))
    q("v_add_u32 %s, %s, %s" % (vPL, sT0, vPL))
    iss, chk = poll(1, 34, vPL, "0")
    iss(q)
    q("s_waitcnt vmcnt(0)")
    spin(q, iss, chk)
    q.add(publish(None, "0"))
    q(e + ":")
    q.add(no_conv())
    q("s_branch L_shared")
    return q


def build():
    pro = prologue()
    br = Seq()
    br("s_cmp_ge_u32 s2, %d" % NG)
    br("s_cbranch_scc1 L_roleF")
    g, sh, (front, f), rr = role_g(), shared(), role_f(), role_r()
    drop = [x[5:] for x in O.x.split(",") if x.startswith("drop:")]
    if drop:
        def keep(i):
            t = "flag" if (i.kind == "vm" and i.text.startswith("buffer_store_dword " + vTAG)) else (i.tag or "")
            return not (i.kind == "vm" and t in drop)
        g = [i for i in g if keep(i)]
    main = resolve_waits(list(pro) + list(br) + list(g) + list(sh))
    fr = resolve_waits(list(pro) + list(f))
    k = [n for n, i in enumerate(fr) if i.text == "L_roleF:"][0]
    rr = resolve_waits(list(pro) + list(front) + list(rr))
    k2 = [n for n, i in enumerate(rr) if i.text == "L_roleR:"][0]
    rep = []
    fr = fr[k:]
    if O.near:
        ig = [n for n, i in enumerate(main) if i.text == "L_G1:"][0]
        jf = [n for n, i in enumerate(fr) if i.text == "L_F1:"][0]
        body = main[:ig] + [I("s_branch L_G1")] + fr[:jf] + [I("s_branch L_F1")] + main[ig:] + fr[jf:] + rr[k2:]
        if O.near == 2:
            ib = [n for n, i in enumerate(main) if i.text == "s_cbranch_scc1 L_roleF"][0]
            body = main[:ib] + [I("s_cbranch_scc0 L_roleG")] + fr[:jf] + [I("s_branch L_F1"), I("L_roleG:", "label")] + main[ib + 1:] + fr[jf:] + rr[k2:]
    else:
        body = main + fr + rr[k2:]
    code = pad_hazards(body + list(flat([SLOW[i.text] for i in body if i.text in SLOW])), rep)
    if O.warm:
        wr = [I("L_wret:", "label"), I("s_cmp_ge_u32 s2, %d" % NG), I("s_cbranch_scc1 L_wb_F"), I("s_branch L_wb_G")]
        n = [n for n, i in enumerate(code) if i.text == ("L_G1:", "L_roleG:")[O.near - 1]][0] if O.near else len(code)
        code[n:n] = wr
    code.append(I("L_end:", "label"))
    code.append(I("s_endpgm"))
    if O.warm:
        code = place_stubs(code)
    return code, rep


ENTRY = 0x300


def sizes(code):
    txt = '.amdgcn_target "amdgcn-amd-amdhsa--gfx950"\n.text\n' + re.sub(r"L_we_\w+", "L_end", render(code))
    with tempfile.TemporaryDirectory() as d:
        open(d + "/a.s", "w").write(txt)
        subprocess.run(["clang", "-x", "assembler", "-target", "amdgcn-amd-amdhsa", "-mcpu=gfx950", "-c", d + "/a.s", "-o", d + "/a.o"], check=True)
        o = subprocess.run(["llvm-objdump", "-d", "--mcpu=gfx950", d + "/a.o"], capture_output=True, text=True).stdout
    n = [4 * len(m.group(1).split()) for m in re.finditer(r"// [0-9A-F]{12}: ([0-9A-F ]+?)(?: <.*)?$", o, re.M)]
    assert len(n) == sum(i.kind != "label" for i in code)
    return n


def place_stubs(code):
    sz = iter(sizes(code))
    out, addr, page, sect, hold = [], ENTRY, 0, "-", False
    stubs = {"G": [], "S": [], "F": []}

    def stub():
        name = "L_st%d" % sum(map(len, stubs.values()))
        b = I("s_cbranch_execz ?")
        stubs[sect].append((name, b))
        out.extend([I(name + ":", "label"), b])
    for i in code:
        if i.kind == "label":
            out.append(i)
            t = i.text
            hold = t.startswith("L_wa_")
            sect = {"L_wb_G:": "G", "L_shared:": "S", "L_F1:": "-", "L_roleF:": "-", "L_wb_F:": "F", "L_roleR:": "-"}.get(t, sect)
            if t == "L_shared:":
                stub()
                addr += 4
                page = addr >> 12
            continue
        if addr >> 12 != page and not hold and not (out[-1].text.startswith("L_wb_")):
            page = addr >> 12
            if sect in stubs:
                stub()
                addr += 4
        out.append(i)
        addr += next(sz)
    ent = {}
    for role in "GF":
        st = stubs[role]
        for w in range(3):
            ch = st[w::3]
            ent["L_we_%s%d" % (role, w)] = ch[0][0] if ch else "L_wb_" + role
            for a, b in zip(ch, ch[1:] + [("L_wb_" + role,)]):
                a[1].text = "s_cbranch_execz " + b[0]
    st = stubs["S"]
    for a, b in zip(st, st[1:] + [("L_wret",)]):
        a[1].text = "s_cbranch_execz " + b[0]
    ent["L_we_F3"] = st[0][0]
    ent["L_we_G3"] = st[1][0] if len(st) > 1 else "L_wb_G"
    for i in out:
        i.text = re.sub(r"L_we_\w+", lambda m: ent[m.group(0)], i.text)
    print("stubs", {k: len(v) for k, v in stubs.items()}, "code bytes", addr - ENTRY, file=sys.stderr)
    return out


code, rep = build()
hdr = open("cdna_kernels/%s.s.ref" % NAME).read().split("; Override launch")[0]
txt = hdr + """; Generated by gen/gen.py: one persistent workgroup per CU; phases hand data over through d_ws with tagged flags.
; @launch grid=(256,1,1) block=(256,1,1) lds=%d
.amdgcn_target "amdgcn-amd-amdhsa--gfx950"
.text
.globl %s_kernel
.p2align 12
.p2align 8
.type %s_kernel,@function
%s_kernel:
""" % (LDS_BYTES, NAME, NAME, NAME) + render(code) + """.section .rodata,"a"
.p2align 6
.amdhsa_kernel %s_kernel
  .amdhsa_next_free_vgpr 512
  .amdhsa_next_free_sgpr 102
  .amdhsa_accum_offset 256
  .amdhsa_group_segment_fixed_size 0
  .amdhsa_kernarg_size 96
  .amdhsa_user_sgpr_count 2
  .amdhsa_user_sgpr_kernarg_segment_ptr 1
  .amdhsa_system_sgpr_workgroup_id_x 1
.end_amdhsa_kernel
""" % NAME
open(O.o, "w").write(txt)
print("wrote", O.o, len(code), "lines;", len(rep), "pads", file=sys.stderr)
for p in rep:
    print("  pad", p, file=sys.stderr)
```
